```python
import torch

def _softmax(x, axis=-1):
    return torch.softmax(x, dim=axis)
def _gelu(x):
    return torch.nn.functional.gelu(x, approximate="tanh")
def _silu(x):
    return torch.nn.functional.silu(x)
def _sigmoid(x):
    return torch.sigmoid(x)
def _layernorm(x, axis=-1, eps=1e-5):
    m = x.mean(dim=axis, keepdim=True)
    v = x.var(dim=axis, keepdim=True, unbiased=False)
    return (x - m) / torch.sqrt(v + eps)
def _scatter_add(tgt, idx, src, axis=0):
    return tgt.clone().index_add_(axis, idx, src)
def _segment_sum(src, seg, n):
    out = torch.zeros((n,) + src.shape[1:], dtype=src.dtype)
    return out.index_add_(0, seg, src)
def _pad(x, pw):
    flat = tuple(v for pair in reversed(pw) for v in pair)
    return torch.nn.functional.pad(x, flat)

kernel_name = 'parallel_sum__ssm_conv_h3__glu_gated_geglu__prompt'

def setup_inputs():

    _w = (lambda a: (lambda t: t.to(torch.bfloat16) if t.is_floating_point() else t)(torch.as_tensor(a)))
    def _A_setup():
        B, S, D = 1, 2048, 640
        ks = 4
        return {
            "q": _w((lambda *s: torch.randn(*s, dtype=torch.bfloat16) * 0.05)(B, S, D)),
            "k": _w((lambda *s: torch.randn(*s, dtype=torch.bfloat16) * 0.2)(B, S, D)),
            "v": _w((lambda *s: torch.randn(*s, dtype=torch.bfloat16) * 0.2)(B, S, D)),
            "shift_k": _w((lambda *s: torch.randn(*s, dtype=torch.bfloat16) * 0.2)(D, ks) * 0.5),
            "ssm_k": _w((lambda *s: torch.randn(*s, dtype=torch.bfloat16) * 0.4)(D, S) * (1.0 / S ** 0.5)),
            "ssm_D": _w((lambda *s: torch.randn(*s, dtype=torch.bfloat16) * 0.2)(D)),
        }
    _A_in = _A_setup()

    def _B_setup():
        B, S, Dm, Df = 1, 2048, 640, 1728
        return {
            "x": _w((lambda *s: torch.randn(*s, dtype=torch.bfloat16) * 0.05)(B, S, Dm)),
            "w_gate": _w((lambda *s: torch.randn(*s, dtype=torch.bfloat16) * 0.4)(Dm, Df) * (Dm ** -0.5)),
            "w_up": _w((lambda *s: torch.randn(*s, dtype=torch.bfloat16) * 0.4)(Dm, Df) * (Dm ** -0.5)),
            "w_down": _w((lambda *s: torch.randn(*s, dtype=torch.bfloat16) * 0.4)(Df, Dm) * (Df ** -0.5)),
        }
    _B_in = _B_setup()

    return {
        "A_q": _A_in["q"],
        "A_k": _A_in["k"],
        "A_v": _A_in["v"],
        "A_shift_k": _A_in["shift_k"],
        "A_ssm_k": _A_in["ssm_k"],
        "A_ssm_D": _A_in["ssm_D"],
        "B_x": _B_in["x"],
        "B_w_gate": _B_in["w_gate"],
        "B_w_up": _B_in["w_up"],
        "B_w_down": _B_in["w_down"],
    }

def reference(A_q, A_k, A_v, A_shift_k, A_ssm_k, A_ssm_D, B_x, B_w_gate, B_w_up, B_w_down):
    def _A_ref(q, k, v, shift_k, ssm_k, ssm_D):
        B, S, D = q.shape
        ks = shift_k.shape[-1]
        k_pad = _pad(k, ((0, 0), (ks - 1, 0), (0, 0)))
        k_shift = torch.zeros_like(k)
        for t in range(ks):
            k_shift = k_shift + k_pad[:, t:t + S, :] * shift_k[:, ks - 1 - t][None, None, :]
        kv = k_shift * v
        L = 2 * S
        kv_pad = _pad(kv, ((0, 0), (0, S), (0, 0)))
        kf_pad = _pad(ssm_k, ((0, 0), (0, S)))
        kv_f = (lambda x, axes=(-2,-1): torch.fft.rfft2(x.float(), dim=axes))(kv_pad[:, None, :, :], axes=(1, 2))
        kf_f = (lambda x, axes=(-2,-1): torch.fft.rfft2(x.float(), dim=axes))(kf_pad[:, None, :], axes=(1, 2))
        kf_f = (lambda x, *d: x.permute(*d))(kf_f, 1, 2, 0)
        y_f = kv_f * kf_f[None, :, :, :]
        y = (lambda x, s, axes=(-2,-1): torch.fft.irfft2(x, s=s, dim=axes).to(torch.bfloat16))(y_f, (1, L), axes=(1, 2))[:, 0, :S, :]
        y = y + kv * ssm_D[None, None, :]
        return q * y

    def _B_ref(x, w_gate, w_up, w_down):
        g = torch.einsum("bsd,df->bsf", x, w_gate)
        u = torch.einsum("bsd,df->bsf", x, w_up)
        h = _gelu(g) * u
        return torch.einsum("bsf,fd->bsd", h, w_down)

    x = A_q
    xn = _layernorm(x, axis=-1)
    return x + _A_ref(xn, A_k, A_v, A_shift_k, A_ssm_k, A_ssm_D) + _B_ref(xn, B_w_gate, B_w_up, B_w_down)
```

```python
class Asm:
    def __init__(self):
        self.lines = []
        self._lbl = 0
    def __call__(self, s):
        for l in s.strip("\n").split("\n"):
            self.lines.append(l.strip() if not l.strip().endswith(":") else l.strip())
    def c(self, s): self.lines.append("; " + s)
    def label(self, base="L"):
        self._lbl += 1
        return f"{base}_{self._lbl}"
    def text(self, verbose=False):
        import hazard
        return "\n".join(hazard.fix(self.lines, verbose)) + "\n"

def v(a, n=1):
    return f"v{a}" if n == 1 else f"v[{a}:{a+n-1}]"
def s(a, n=1):
    return f"s{a}" if n == 1 else f"s[{a}:{a+n-1}]"
def a_(a, n=1):
    return f"a{a}" if n == 1 else f"a[{a}:{a+n-1}]"

def srd(A, d, b, nbytes, off=0):
    if off:
        A(f"s_add_u32 s{d}, s{b}, {off}")
        A(f"s_addc_u32 s{d+1}, s{b+1}, 0")
    else:
        A(f"s_mov_b32 s{d}, s{b}")
        A(f"s_mov_b32 s{d+1}, s{b+1}")
    A(f"s_mov_b32 s{d+2}, {nbytes}")
    A(f"s_mov_b32 s{d+3}, 0x00020000")

def kernel_wrap(name, body, vgpr, sgpr=100, agpr=0):
    accum = (vgpr + 3) // 4 * 4
    nfv = accum + agpr if agpr else vgpr
    return f""".text
.globl {name}
.p2align 8
.type {name},@function
{name}:
{body}s_endpgm
.section .rodata,"a"
.p2align 6
.amdhsa_kernel {name}
  .amdhsa_next_free_vgpr {nfv}
  .amdhsa_next_free_sgpr {sgpr}
  .amdhsa_accum_offset {accum}
  .amdhsa_group_segment_fixed_size 0
  .amdhsa_kernarg_size 104
  .amdhsa_user_sgpr_count 2
  .amdhsa_user_sgpr_kernarg_segment_ptr 1
  .amdhsa_system_sgpr_workgroup_id_x 1
.end_amdhsa_kernel
"""

B128_GROUPS = [
    list(range(0,4))+list(range(12,16))+list(range(20,28)),
    list(range(4,12))+list(range(16,20))+list(range(28,32)),
    list(range(32,36))+list(range(44,48))+list(range(52,60)),
    list(range(36,44))+list(range(48,52))+list(range(60,64)),
]
def b128_conflicts(addrs):
    tot = 0
    for g in B128_GROUPS:
        banks = {}
        for l in g:
            a = addrs[l]
            assert a % 16 == 0
            q = (a // 16) % 16
            banks.setdefault(q, set()).add(a)
        tot += max(len(x) for x in banks.values())
    return tot
def b64_conflicts(addrs):
    tot = 0
    for g in (range(0,32), range(32,64)):
        banks = {}
        for l in g:
            a = addrs[l]
            assert a % 8 == 0
            q = (a // 8) % 32
            banks.setdefault(q, set()).add(a)
        tot += max(len(x) for x in banks.values())
    return tot
```

```python
import sys, importlib
from asmlib import *
NAME = "parallel_sum__ssm_conv_h3__glu_gated_geglu__prompt"
HEAD = open(f"cdna_kernels/{NAME}.s.ref").read().split("; Override launch")[0]
def build(kernels, path):
    out = HEAD
    for name, text, (g, b, lds) in kernels:
        out += f"; @launch kernel={name} grid=({g},1,1) block=({b},1,1) lds={lds}\n"
    out += '.amdgcn_target "amdgcn-amd-amdhsa--gfx950"\n'
    seen = set()
    for name, text, _ in kernels:
        if name in seen: continue
        seen.add(name)
        out += text
    open(path, "w").write(out)
```

```python
import re
REG = re.compile(r"^(v|a|s)(\d+)$|^(v|a|s)\[(\d+):(\d+)\]$")
def regs(tok):
    tok = tok.strip()
    neg = tok.lstrip("-|").rstrip("|")
    m = REG.match(neg)
    if m:
        if m.group(1): return {(m.group(1), int(m.group(2)))}
        return {(m.group(3), i) for i in range(int(m.group(4)), int(m.group(5)) + 1)}
    if neg in ("vcc",): return {("s", 106), ("s", 107)}
    if neg == "vcc_lo": return {("s", 106)}
    if neg == "vcc_hi": return {("s", 107)}
    if neg == "exec": return {("s", 126), ("s", 127)}
    if neg == "exec_lo": return {("s", 126)}
    if neg == "exec_hi": return {("s", 127)}
    if neg == "m0": return {("s", 124)}
    return set()
TRANS = ("v_exp_", "v_log_", "v_rcp_", "v_rsq_", "v_sqrt_", "v_sin_", "v_cos_")
class I:
    def __init__(self, text):
        self.text = text
        t = text.split(";")[0].strip()
        self.label = t.endswith(":")
        self.empty = (t == "") or t.startswith(".")
        self.op = ""; self.w = set(); self.r = set(); self.kind = ""
        self.nop = 0; self.passes = 0
        self.srcC = set(); self.srcAB = set(); self.sdata = set(); self.lanesel = set()
        self.dpp = False; self.lds_dma = False; self.target = None
        if self.label or self.empty: return
        parts = t.split(None, 1)
        self.op = op = parts[0]
        rest = parts[1] if len(parts) > 1 else ""
        pre = " ".join(re.findall(r"(?:op_sel|op_sel_hi|neg_lo|neg_hi):\[[^\]]*\]", rest))
        rest = re.sub(r"\s+(?:op_sel|op_sel_hi|neg_lo|neg_hi):\[[^\]]*\]", "", rest)
        ops = [x.strip() for x in rest.split(",")]
        mods = ""
        if ops:
            last = ops[-1].split(None, 1)
            if last:
                ops[-1] = last[0]; mods = last[1] if len(last) > 1 else ""
        if not op.startswith("v_pk_"): mods += " " + pre
        R = [regs(o) for o in ops]
        U = lambda l: set().union(*l) if l else set()
        if op.startswith("v_mfma") or op.startswith("v_smfma"):
            self.kind = "mfma"; self.w = R[0]; self.srcAB = R[1] | R[2]; self.srcC = R[3]; self.r = self.srcAB | self.srcC
            self.passes = 8 if "32x32x16" in op else 4 if "16x16x32" in op else None
            assert self.passes, op
        elif op.startswith("v_"):
            self.kind = "valu"
            self.dpp = "dpp" in op or "row_" in mods or "quad_perm" in mods or "wave_" in mods
            if op.startswith("v_nop"): return
            if op.startswith("v_permlane") and "swap" in op or op.startswith("v_swap"):
                self.w = R[0] | R[1]; self.r = R[0] | R[1]
            elif re.match(r"v_(add|sub|subrev)_co_u32", op):
                self.w = R[0] | R[1]; self.r = U(R[2:])
            elif re.match(r"v_(addc|subb|subbrev)_co_u32", op):
                self.w = R[0] | R[1]; self.r = U(R[2:])
            elif op.startswith("v_cmpx"):
                raise Exception("no cmpx")
            else:
                self.w = R[0]; self.r = U(R[1:])
                if op.startswith(("v_fmac", "v_mac", "v_pk_fmac", "v_dot2c", "v_writelane")) or "op_sel" in mods or "sdwa" in op or self.dpp:
                    self.r |= R[0]
                if op.startswith("v_cndmask") and len(ops) == 3: self.r |= regs("vcc")
                if op.startswith(("v_readlane", "v_writelane")): self.lanesel = R[2]
        elif op.startswith("ds_"):
            self.kind = "ds"
            if op.startswith(("ds_read", "ds_bpermute", "ds_permute", "ds_swizzle")) or "_rtn" in op:
                self.w = R[0]; self.r = U(R[1:])
            else: self.r = U(R)
        elif op.startswith("buffer_"):
            self.kind = "vmem"
            allm = (ops[-1] + " " + mods).split()
            if op.startswith("buffer_load"):
                if "lds" in allm:
                    self.lds_dma = True; self.r = U(R) | regs("m0")
                else: self.w = R[0]; self.r = U(R[1:])
            elif op.startswith("buffer_store"):
                self.r = U(R)
                if "x3" in op or "x4" in op: self.sdata = R[0]
            elif op.startswith("buffer_atomic"):
                self.r = U(R)
                if "sc0" in allm: self.w = R[0]
            else: self.r = U(R)
        elif op.startswith("global_"):
            self.kind = "vmem"
            if op.startswith("global_load_lds"): self.lds_dma = True; self.r = U(R) | regs("m0")
            elif op.startswith("global_load"): self.w = R[0]; self.r = U(R[1:])
            else:
                self.r = U(R)
                if "store" in op and ("x3" in op or "x4" in op): self.sdata = R[1]
        elif op.startswith("s_"):
            self.kind = "salu"
            if op == "s_nop": self.nop = int(ops[0], 0) + 1
            if op.startswith(("s_branch", "s_cbranch")): self.target = ops[0]; return
            if op.startswith(("s_load", "s_buffer_load", "s_memtime", "s_memrealtime")):
                self.kind = "smem"; self.w = R[0]; self.r = U(R[1:]); return
            if op.startswith(("s_cmp", "s_bitcmp", "s_waitcnt", "s_nop", "s_barrier", "s_endpgm", "s_sleep", "s_setprio", "s_sendmsg")):
                self.r = U(R)
            else:
                self.w = R[0]; self.r = U(R[1:])
                if "saveexec" in op: self.w |= regs("exec")
        else:
            raise Exception("unknown op " + text)
    def states(self): return self.nop if self.nop else 1

def need(p, c):
    n = 0
    isS = lambda x: {r for r in x if r[0] == "s"}
    isV = lambda x: {r for r in x if r[0] != "s"}
    if p.kind == "valu":
        ws, wv = isS(p.w), isV(p.w)
        if ws:
            if c.kind in ("valu",) and ws & c.r: n = max(n, 2)
            if c.kind == "valu" and ws & c.lanesel: n = max(n, 4)
            if c.kind == "vmem" and ws & c.r: n = max(n, 5)
            if ws & regs("exec"):
                if c.kind == "mfma": n = max(n, 4)
                if c.dpp: n = max(n, 5)
                if c.op.startswith(("v_readlane", "v_readfirstlane", "v_writelane", "v_permlane")): n = max(n, 4)
        if wv:
            if c.kind == "valu" and c.dpp and wv & c.r: n = max(n, 2)
            if c.op.startswith(("v_readlane", "v_readfirstlane")) and wv & c.r: n = max(n, 1)
            if c.op.startswith("v_permlane") and wv & c.r: n = max(n, 2)
            if c.kind == "mfma" and wv & c.r: n = max(n, 2)
            if p.op.startswith(TRANS) and c.kind == "valu" and not c.op.startswith(TRANS) and wv & (c.r | c.w): n = max(n, 1)
            if p.op.startswith(TRANS) and c.kind in ("vmem", "ds") and wv & c.r: n = max(n, 1)
            if (("op_sel" in p.text and not p.op.startswith("v_pk_")) or "sdwa" in p.op) and c.kind == "valu" and wv & (c.r | c.w): n = max(n, 1)
    if p.kind == "salu" and (p.w & regs("m0")) and c.lds_dma: n = max(n, 1)
    if p.sdata and p.sdata & c.w:
        n = max(n, 2 if c.kind == "valu" else 1)
    if p.kind == "mfma":
        big = {4: 8, 8: 12}[p.passes]
        if c.kind == "mfma":
            if p.w & c.srcAB: n = max(n, big)
            if p.w & c.srcC:
                if not (p.w == c.srcC and p.passes == c.passes): n = max(n, {4: 6, 8: 10}[p.passes])
            elif p.w & c.w: n = max(n, {4: 6, 8: 10}[p.passes])
        elif c.kind in ("valu", "vmem", "ds"):
            if p.w & (c.r | c.w): n = max(n, big)
            if c.kind == "valu" and p.srcC & c.w: n = max(n, {4: 3, 8: 7}[p.passes])
    return n

def fix(lines, verbose=False):
    ins = [I(l) for l in lines]
    W = 14
    def prev_window(seq, idx):
        out = []; d = 0; j = idx - 1
        while j >= 0 and d < W:
            x = seq[j]
            if not (x.label or x.empty):
                if x.op in ("s_branch", "s_endpgm"): break
                out.append((x, d)); d += x.states()
            j -= 1
        return out
    res = []
    added = 0
    for x in ins:
        if not (x.label or x.empty):
            k = 0
            for p, d in prev_window(res, len(res)):
                k = max(k, need(p, x) - d)
            if k > 0:
                res.append(I(f"s_nop {k-1}")); added += 1
                if verbose: print("nop", k, "before", x.text)
        res.append(x)
    changed = True
    while changed:
        changed = False
        labels = {x.text.split(";")[0].strip()[:-1]: i for i, x in enumerate(res) if x.label}
        for i, x in enumerate(res):
            if x.target is None: continue
            win = prev_window(res, i)
            j = labels[x.target] + 1; d2 = 1; k = 0
            while j < len(res) and d2 < W:
                y = res[j]
                if not (y.label or y.empty):
                    for p, d in win: k = max(k, need(p, y) - d - d2)
                    if y.target is not None or y.op == "s_endpgm": break
                    d2 += y.states()
                j += 1
            if k > 0:
                res.insert(i, I(f"s_nop {k-1}")); changed = True
                if verbose: print("nop", k, "before branch", x.text)
                break
    return [x.text for x in res]
```

```python
from asmlib import *
from layout import *

FB = [0, 4176, 8336, 12496]
G0 = 16656 + 512
G1 = G0 + 4640
CONV_WSZ = G1 + 4096 + 16

def chk():
    def faddr(l):
        b, kq = l % 16, l // 16
        j = (b + 1) % 4
        y = -8*kq + 8*((b-3)//4) + 32
        return FB[j] + 2*y
    def gaddr(l):
        n, kq = l % 16, l // 16
        return (G0 if n & 1 else G1) + 16*(4*(n >> 1) + kq)
    print("F conflicts", b128_conflicts([faddr(l) for l in range(64)]), "G", b128_conflicts([gaddr(l) for l in range(64)]))

def mfma_order():
    order = []
    for p in range(8):
        cs = list(range(8 - p))
        order += [(p, c) for c in cs]
    tail = [(5,2),(5,1),(5,0),(6,1),(6,0),(7,0)]
    head = [x for x in order if x[0] <= 3]
    mid = [(4,0),(4,3),(4,1),(4,2)]
    res = head + mid + tail
    assert sorted(res) == sorted(order)
    for a, b in zip(res, res[1:]): assert sum(a) != sum(b), (a, b)
    return res

def conv_setup(A, V, SG):
    L = V["lane"]; t0, t1, t2 = V["t0"], V["t1"], V["t2"]
    ldsb = SG["ldsb"]
    A(f"""
    v_and_b32 v{t0}, 15, v{L}              ; b / n
    v_lshrrev_b32 v{t1}, 4, v{L}           ; kq / g
    v_add_u32 v{t2}, 1, v{t0}
    v_and_b32 v{V['fa']}, 3, v{t2}         ; j
    v_lshrrev_b32 v{t2}, 2, v{t2}
    v_lshlrev_b32 v{t2}, 4, v{t2}          ; *16 bytes
    v_cmp_ne_u32 vcc, 0, v{V['fa']}
    v_mul_u32_u24 v{V['fa']}, 4160, v{V['fa']}
    v_add_u32 v{V['fa']}, v{V['fa']}, v{t2}
    v_cndmask_b32 v{t2}, 0, 16, vcc
    v_add_u32 v{V['fa']}, v{V['fa']}, v{t2}
    v_lshlrev_b32 v{t2}, 4, v{t1}
    v_sub_u32 v{V['fa']}, v{V['fa']}, v{t2}
    v_add_u32 v{V['fa']}, 48, v{V['fa']}       ; +64 -16
    v_add_u32 v{V['fa']}, s{ldsb}, v{V['fa']}
    v_and_b32 v{V['ga']}, 1, v{t0}
    v_cmp_eq_u32 vcc, 1, v{V['ga']}
    v_lshrrev_b32 v{V['ga']}, 1, v{t0}
    v_lshlrev_b32 v{V['ga']}, 6, v{V['ga']}
    v_add_u32 v{V['ga']}, v{V['ga']}, v{t2}
    v_mov_b32 v{t2}, {G1-448}
    v_mov_b32 v{V['ka']}, {G0-448}
    v_cndmask_b32 v{t2}, v{t2}, v{V['ka']}, vcc
    v_add3_u32 v{V['ga']}, v{V['ga']}, v{t2}, s{ldsb}
    ; epilogue: t_l = 64g + 2b ; kv dword at G0 + 2*(t + 6 - 2*(t%8)) ; t%8 = 2*(b&3)
    v_lshlrev_b32 v{t2}, 7, v{t1}          ; 128 g
    v_lshl_add_u32 v{V['zo']}, v{t0}, 2, v{t2}
    v_and_b32 v{t2}, 3, v{t0}
    v_lshlrev_b32 v{t2}, 3, v{t2}          ; 2*2*(2*(b&3)) = 8*(b&3)
    v_sub_u32 v{V['ka']}, v{V['zo']}, v{t2}
    v_add_u32 v{V['ka']}, {G0+12}, v{V['ka']}
    v_add_u32 v{V['ka']}, s{ldsb}, v{V['ka']}
    v_lshlrev_b32 v{V['l16']}, 4, v{L}
    ; head fix: copy j=l/16, dword w=l%16 -> global dword (w+j-16) if >=0 ; LDS addr FB[j]+4w
    v_add_u32 v{t2}, v{t0}, v{t1}
    v_subrev_u32 v{t2}, 16, v{t2}
    v_lshlrev_b32 v{V['ho']}, 2, v{t2}
    v_cmp_gt_i32 vcc, 0, v{t2}
    v_mov_b32 v{t2}, 0x7fff0000
    v_cndmask_b32 v{V['ho']}, v{V['ho']}, v{t2}, vcc
    v_cmp_ne_u32 vcc, 0, v{t1}
    v_mul_u32_u24 v{V['hl']}, 4160, v{t1}
    v_cndmask_b32 v{t2}, 0, 16, vcc
    v_add_u32 v{V['hl']}, v{V['hl']}, v{t2}
    v_lshl_add_u32 v{V['hl']}, v{t0}, 2, v{V['hl']}
    v_add_u32 v{V['hl']}, s{ldsb}, v{V['hl']}
    v_cmp_gt_u32 vcc, 32, v{L}
    v_mov_b32 v{t2}, {G1-512-512}
    v_mov_b32 v{t0}, {G0-512}
    v_cndmask_b32 v{t2}, v{t2}, v{t0}, vcc
    v_add3_u32 v{t2}, v{t2}, v{V['l16']}, s{ldsb}
    v_mov_b32 v{V['F']}, 0
    v_mov_b32 v{V['F']+1}, 0
    v_mov_b32 v{V['F']+2}, 0
    v_mov_b32 v{V['F']+3}, 0
    ds_write_b128 v{t2}, v[{V['F']}:{V['F']+3}]
    """)

def conv_load(A, V, SG):
    ch, ldsb, t = SG["ch"], SG["ldsb"], SG["tmp"]
    sh, sk = SG["srd_h"], SG["srd_kr"]
    A(f"""
    s_lshl_b32 s{t}, s{ch}, 12
    s_lshl_b32 s{t+1}, s{ch}, 13
    buffer_load_dword v{V['hd']}, v{V['ho']}, s[{sh}:{sh+3}], s{t} offen
    """)
    order = [("g", 0), ("f", 0), ("g", 1), ("f", 1), ("f", 2), ("f", 3)]
    for kind, j in order:
        if kind == "g":
            A(f"s_add_u32 m0, s{ldsb}, {G0 if j == 0 else G1}")
            if j == 1: A(f"s_add_u32 s{t+1}, s{t+1}, 4096")
            else: A("s_nop 0")
            for i in range(4):
                A(f"buffer_load_dwordx4 v{V['l16']}, s[{sk}:{sk+3}], s{t+1} offen offset:{1024*i} lds")
        else:
            A(f"s_add_u32 m0, s{ldsb}, {FB[j]+64}")
            if j > 0: A(f"s_add_u32 s{t}, s{t}, 4")
            else: A("s_nop 0")
            for i in range(4):
                A(f"buffer_load_dwordx4 v{V['l16']}, s[{sh}:{sh+3}], s{t} offen offset:{1024*i} lds")

def conv_compute(A, V, SG):
    ACC, Fb, Gb = V["acc"], V["F"], V["G"]
    order = mfma_order()
    def reads(r):
        buf = r & 1
        lst = []
        lst.append(("F", 0))
        for c in range(8): lst.append(("G", c))
        for p in range(1, 8): lst.append(("F", p))
        out = []
        for kind, i in lst:
            if kind == "F":
                reg = Fb + buf*32 + 4*i
                out.append(f"ds_read_b128 v[{reg}:{reg+3}], v{V['fa']} offset:{512*i + 64*r}")
            else:
                reg = Gb + buf*32 + 4*i
                out.append(f"ds_read_b128 v[{reg}:{reg+3}], v{V['ga']} offset:{512*i - 64*r + 448}")
        return out
    for l in reads(0): A(l)
    for r in range(8):
        buf = r & 1
        nxt = reads(r + 1) if r < 7 else []
        if r == 7:
            ob = Fb + (1 - buf)*32
            nxt = [f"ds_read_b32 v{ob + 2*q + hh}, v{V['ka']} offset:{512*q + 64*hh}" for q in range(8) for hh in range(2)]
        first = (r == 0)
        seen = set()
        for k, (p, c) in enumerate(order):
            q = p + c
            fr = Fb + buf*32 + 4*p; gr = Gb + buf*32 + 4*c
            if r == 0:
                pass
            if k == 0:
                A("s_waitcnt lgkmcnt(0)")
            src = "0" if (first and q not in seen) else f"v[{ACC+4*q}:{ACC+4*q+3}]"
            seen.add(q)
            A(f"v_mfma_f32_16x16x32_bf16 v[{ACC+4*q}:{ACC+4*q+3}], v[{gr}:{gr+3}], v[{fr}:{fr+3}], {src}")
            if k % 2 == 0 and k // 2 < len(nxt):
                A(nxt[k // 2])
    ob = Fb
    t0, t1 = V["t0"], V["t1"]
    sz, t = SG["srd_z"], SG["tmp"]
    A(f"""
    s_lshl_b32 s{t}, s{SG['ch']}, 12
    s_waitcnt lgkmcnt(0)
    s_nop 7
    """)
    for q in range(8):
        for hh in range(2):
            kvr = ob + 2*q + hh
            a0 = ACC + 4*q + 2*hh
            A(f"""
            v_and_b32 v{t0}, 0xffff0000, v{kvr}
            v_lshlrev_b32 v{t1}, 16, v{kvr}
            v_fmac_f32 v{a0}, s{SG['D']}, v{t0}
            v_fmac_f32 v{a0+1}, s{SG['D']}, v{t1}
            v_cvt_pk_bf16_f32 v{kvr}, v{a0}, v{a0+1}
            buffer_store_dword v{kvr}, v{V['zo']}, s[{sz}:{sz+3}], s{t} offen offset:{512*q + 64*hh}
            """)

def gen_conv(NW=4):
    A = Asm()
    NWG = 640 // NW
    V = dict(lane=1, t0=2, t1=3, t2=4, fa=5, ga=6, ka=7, zo=8, l16=9, ho=10, hl=11, hd=12, acc=16, F=48, G=112)
    SG = dict(ldsb=3, ch=34, tmp=36, srd_h=16, srd_kr=20, srd_z=24, D=35)
    A(f"""
    s_cmp_ge_u32 s2, {NWG}
    s_cbranch_scc1 L_conv_end
    s_load_dwordx4 s[4:7], s[0:1], 32
    s_load_dwordx2 s[12:13], s[0:1], 96    ; ws
    v_lshrrev_b32 v2, 6, v0
    v_and_b32 v1, 63, v0
    v_readfirstlane_b32 s33, v2            ; wave
    s_mul_i32 s34, s2, {NW}
    s_add_u32 s34, s34, s33                ; channel
    s_mul_i32 s3, s33, {CONV_WSZ}
    s_lshr_b32 s32, s34, 1
    s_lshl_b32 s32, s32, 2
    s_waitcnt lgkmcnt(0)
    s_load_dword s35, s[6:7], s32
    """)
    srd(A, 16, 4, SZ_SSM)
    srd(A, 20, 12, SZ_KR, KR_OFF)
    srd(A, 24, 12, SZ_ZT, ZT_OFF)
    conv_setup(A, V, SG)
    conv_load(A, V, SG)
    A(f"""
    s_waitcnt vmcnt(24)
    ds_write_b32 v{V['hl']}, v{V['hd']}
    s_waitcnt lgkmcnt(0)
    s_bitcmp1_b32 s34, 0
    s_cbranch_scc1 L_conv_odd
    s_lshl_b32 s35, s35, 16
    L_conv_odd:
    s_and_b32 s35, s35, 0xffff0000
    s_waitcnt vmcnt(0)
    """)
    conv_compute(A, V, SG)
    A("L_conv_end:")
    return kernel_wrap("conv_kernel", A.text(), vgpr=176), (NWG, 64*NW, CONV_WSZ*NW)

if __name__ == "__main__":
    chk(); print(mfma_order()); print(CONV_WSZ)
```

```python
from asmlib import *
from layout import *
import math

SLOT = 49152
OFF_BG, OFF_BU = 32768, 40960
CS_OFF = 3*SLOT
G1_LDS = 3*SLOT + 512
NST = 10

def chk():
    for ks in range(4):
        ad = []
        for l in range(64):
            row, h = l % 32, l // 32
            ad.append(row*128 + (((2*ks + h) ^ ((row >> 1) & 7))*16))
        assert b128_conflicts(ad) == 4
    for wn in range(2):
        ad = []
        for l in range(64):
            i, fb, kh = l % 16, (l // 16) % 2, l // 32
            k = 8*kh + i//4
            byte = wn*64 + fb*32 + (i % 4)*8
            byte ^= ((k >> 1) & 1) << 6
            ad.append(k*128 + byte)
        assert b64_conflicts(ad) == 2
    for half in range(2):
        ad = []
        for l in range(64):
            c, row = l % 4 + 4*half, l // 4
            ad.append(row*128 + ((c ^ (((row >> 1) & 1) << 2))*16))
        assert b128_conflicts(ad) == 4, b128_conflicts(ad)
    print("banks ok")

def gen_gemm1_body(A, end_label, flags=None):
    A(f"""
    s_load_dwordx2 s[4:5], s[0:1], 0       ; x
    s_load_dwordx4 s[28:31], s[0:1], 56
    s_load_dwordx2 s[6:7], s[0:1], 96      ; ws
    v_lshrrev_b32 v2, 6, v0
    v_and_b32 v1, 63, v0                   ; lane
    v_readfirstlane_b32 s3, v2             ; wave
    s_and_b32 s32, s2, 7                   ; xcd
    s_lshr_b32 s33, s2, 3                  ; slot
    s_lshr_b32 s34, s32, 1
    s_mul_i32 s34, s34, 27
    s_add_u32 s34, s34, s33                ; idx
    s_lshr_b32 s35, s34, 2                 ; nt
    s_and_b32 s34, s34, 3
    s_and_b32 s32, s32, 1
    s_lshl_b32 s32, s32, 2
    s_add_u32 s34, s34, s32                ; mt
    s_waitcnt lgkmcnt(0)
    """)
    srd(A, 8, 4, SZ_X)
    srd(A, 12, 28, SZ_W1)
    srd(A, 16, 30, SZ_W1)
    srd(A, 20, 6, SZ_H, H_OFF)
    srd(A, 24, 6, SZ_ST, ST_OFF)
    A(f"""
    s_cmp_ge_u32 s3, 4
    s_cbranch_scc1 L_g1_loader
    """)
    XA = 4
    WA = 12
    FR = 16
    ST = 64
    ACC = 128
    A(f"""
    s_lshr_b32 s36, s3, 1                  ; wm
    s_and_b32 s37, s3, 1                   ; wn
    v_and_b32 v2, 31, v1
    v_lshrrev_b32 v3, 5, v1                ; h
    s_lshl_b32 s38, s34, 8
    s_lshl_b32 s39, s36, 7
    s_add_u32 s38, s38, s39
    v_add_u32 v60, s38, v2
    v_lshlrev_b32 v60, 3, v60
    """)
    if flags is None:
        for rb in range(4):
            A(f"buffer_load_dwordx2 v[{ST+2*rb}:{ST+2*rb+1}], v60, s[24:27], 0 offen offset:{256*rb}")
    A(f"""
    v_bfe_u32 v61, v2, 1, 3                ; sw
    v_xor_b32 v61, v61, v3                 ; h ^ sw
    v_lshlrev_b32 v62, 7, v2               ; row*128
    s_lshl_b32 s39, s36, 14
    v_add_u32 v62, s39, v62
    """)
    for ks in range(4):
        A(f"""
        v_xor_b32 v63, {2*ks}, v61
        v_lshl_add_u32 v{XA+ks}, v63, 4, v62
        v_add_u32 v{XA+4+ks}, {2*SLOT}, v{XA+ks}
        """)
    A(f"""
    v_and_b32 v61, 15, v1                  ; i
    v_lshrrev_b32 v62, 2, v61              ; i/4
    v_lshl_add_u32 v62, v3, 3, v62         ; k = 8kh + i/4
    v_and_b32 v63, 3, v61
    v_lshlrev_b32 v63, 3, v63              ; (i%4)*8
    v_bfe_u32 v59, v1, 4, 1                ; fb
    v_lshl_add_u32 v63, v59, 5, v63
    s_lshl_b32 s39, s37, 6
    v_add_u32 v63, s39, v63
    v_bfe_u32 v59, v61, 3, 1               ; (k>>1)&1 = (i>>3)&1
    v_lshlrev_b32 v59, 6, v59
    v_xor_b32 v63, v63, v59
    v_lshl_add_u32 v{WA}, v62, 7, v63
    v_add_u32 v{WA}, {OFF_BG}, v{WA}
    v_add_u32 v{WA+1}, {SLOT}, v{WA}
    v_add_u32 v{WA+2}, {2*SLOT}, v{WA}
    """)
    def reads(st, ks, fs):
        slot = st % 3
        F = FR + 24*fs
        xa = XA + (4 if slot == 2 else 0) + ks
        xo = SLOT if slot == 1 else 0
        wa = WA + slot
        L = []
        L.append(f"ds_read_b64_tr_b16 v[{F}:{F+1}], v{wa} offset:{ks*2048}")
        L.append(f"ds_read_b64_tr_b16 v[{F+2}:{F+3}], v{wa} offset:{ks*2048+512}")
        L.append(f"ds_read_b128 v[{F+8}:{F+11}], v{xa} offset:{xo}")
        L.append(f"ds_read_b64_tr_b16 v[{F+4}:{F+5}], v{wa} offset:{8192+ks*2048}")
        L.append(f"ds_read_b64_tr_b16 v[{F+6}:{F+7}], v{wa} offset:{8192+ks*2048+512}")
        for rb in range(1, 4):
            L.append(f"ds_read_b128 v[{F+8+4*rb}:{F+11+4*rb}], v{xa} offset:{xo+4096*rb}")
        return L
    A("s_barrier")
    for l in reads(0, 0, 0): A(l)
    step = 0
    for st in range(NST):
        for ks in range(4):
            fs = step & 1
            F = FR + 24*fs
            last = (st == NST-1 and ks == 3)
            nxt = [] if last else (reads(st, ks+1, 1-fs) if ks < 3 else reads(st+1, 0, 1-fs))
            A("s_waitcnt lgkmcnt(0)")
            if ks == 3 and st < NST-1: A("s_barrier")
            plan = [2, 2, 2, 1, 1, 0, 0, 0]
            ri = 0
            for mi in range(8):
                rb, gu = mi // 2, mi % 2
                ac = ACC + (rb*2 + gu)*16
                src = "0" if step == 0 else f"v[{ac}:{ac+15}]"
                A(f"v_mfma_f32_32x32x16_bf16 v[{ac}:{ac+15}], v[{F+4*gu}:{F+4*gu+3}], v[{F+8+4*rb}:{F+11+4*rb}], {src}")
                for _ in range(plan[mi]):
                    if ri < len(nxt): A(nxt[ri]); ri += 1
            step += 1
    CSG, CSU = 16, 32
    c1 = -2.0*math.log2(math.e)*math.sqrt(2.0/math.pi)
    c2 = c1*0.044715
    A(f"""
    s_barrier
    s_lshl_b32 s39, s37, 7
    v_lshlrev_b32 v59, 4, v3
    v_add_u32 v59, s39, v59
    v_add_u32 v59, {CS_OFF}, v59
    """)
    for j in range(4):
        A(f"ds_read_b128 v[{CSG+4*j}:{CSG+4*j+3}], v59 offset:{32*j}")
        A(f"ds_read_b128 v[{CSU+4*j}:{CSU+4*j+3}], v59 offset:{256+32*j}")
    if flags is not None:
        flags(A, ST)
    A(f"""
    v_lshrrev_b32 v60, 4, v2
    v_mul_u32_u24 v60, {54*1024}, v60
    v_and_b32 v61, 15, v2
    v_lshl_add_u32 v60, v61, 4, v60
    v_lshl_add_u32 v60, v3, 8, v60         ; + h*256
    s_lshr_b32 s39, s38, 4
    s_mul_i32 s39, s39, 54
    s_lshl_b32 s40, s35, 1
    s_add_u32 s39, s39, s40
    s_add_u32 s39, s39, s37
    s_lshl_b32 s39, s39, 10
    s_mov_b32 s41, {hex(f32bits(c1))}
    s_mov_b32 s42, {hex(f32bits(c2))}
    s_waitcnt vmcnt(0) lgkmcnt(0)
    """)
    K0 = 48
    T = 72
    for rb in range(4):
        m, sd = ST + 2*rb, ST + 2*rb + 1
        NM, C1, C2, S2 = K0, K0+2, K0+4, K0+6
        A(f"""
        v_rcp_f32 v{K0+1}, v{sd}
        v_mul_f32 v{S2}, v{sd}, v{sd}
        v_xor_b32 v{NM}, 0x80000000, v{m}
        v_mul_f32 v{C1}, s41, v{K0+1}
        v_mul_f32 v{K0+3}, v{K0+1}, v{K0+1}
        v_mul_f32 v{C2}, s42, v{K0+1}
        v_mul_f32 v{C2}, v{C2}, v{K0+3}
        """)
        ag, au = ACC + rb*32, ACC + rb*32 + 16
        bc = "op_sel_hi:[1,0,1]"
        for grp in range(2):
            prs = [grp*4 + i for i in range(4)]
            for p in prs:
                A(f"v_pk_fma_f32 v[{ag+2*p}:{ag+2*p+1}], v[{CSG+2*p}:{CSG+2*p+1}], v[{NM}:{NM+1}], v[{ag+2*p}:{ag+2*p+1}] {bc}")
            for i, p in enumerate(prs):
                A(f"v_pk_mul_f32 v[{T+2*i}:{T+2*i+1}], v[{ag+2*p}:{ag+2*p+1}], v[{ag+2*p}:{ag+2*p+1}]")
            for i, p in enumerate(prs):
                A(f"v_pk_fma_f32 v[{T+2*i}:{T+2*i+1}], v[{T+2*i}:{T+2*i+1}], v[{C2}:{C2+1}], v[{C1}:{C1+1}] op_sel_hi:[1,0,0]")
            for i, p in enumerate(prs):
                A(f"v_pk_mul_f32 v[{T+2*i}:{T+2*i+1}], v[{T+2*i}:{T+2*i+1}], v[{ag+2*p}:{ag+2*p+1}]")
            for i, p in enumerate(prs):
                A(f"v_exp_f32 v{T+2*i}, v{T+2*i}")
                A(f"v_exp_f32 v{T+2*i+1}, v{T+2*i+1}")
                A(f"v_pk_fma_f32 v[{au+2*p}:{au+2*p+1}], v[{CSU+2*p}:{CSU+2*p+1}], v[{NM}:{NM+1}], v[{au+2*p}:{au+2*p+1}] {bc}")
            for i, p in enumerate(prs):
                A(f"v_pk_fma_f32 v[{T+2*i}:{T+2*i+1}], v[{T+2*i}:{T+2*i+1}], v[{S2}:{S2+1}], v[{S2}:{S2+1}] op_sel_hi:[1,0,0]")
            for i, p in enumerate(prs):
                A(f"v_rcp_f32 v{T+2*i}, v{T+2*i}")
                A(f"v_rcp_f32 v{T+2*i+1}, v{T+2*i+1}")
                A(f"v_pk_mul_f32 v[{au+2*p}:{au+2*p+1}], v[{au+2*p}:{au+2*p+1}], v[{ag+2*p}:{ag+2*p+1}]")
            for i, p in enumerate(prs):
                A(f"v_pk_mul_f32 v[{T+2*i}:{T+2*i+1}], v[{T+2*i}:{T+2*i+1}], v[{au+2*p}:{au+2*p+1}]")
            O = T + 8 + 4*((rb*2 + grp) % 4)
            for i in range(4):
                A(f"v_cvt_pk_bf16_f32 v{O+i}, v{T+2*i}, v{T+2*i+1}")
            A(f"v_permlane32_swap_b32 v{O}, v{O+2}")
            A(f"v_permlane32_swap_b32 v{O+1}, v{O+3}")
            A(f"buffer_store_dwordx4 v[{O}:{O+3}], v60, s[20:23], s39 offen offset:{512*grp}")
        if rb < 3: A(f"s_add_u32 s39, s39, {2*54*1024}")
    A(f"s_branch {end_label}")
    A("L_g1_loader:")
    VA, VB = 4, 12
    CA = 14
    CS = 16
    TMP = 24
    A(f"""
    s_sub_u32 s36, s3, 4                   ; lw
    v_lshrrev_b32 v2, 3, v1                ; l/8
    v_and_b32 v3, 7, v1                    ; l%8
    v_lshrrev_b32 v60, 4, v1               ; l>>4
    s_lshl_b32 s38, s34, 8
    s_lshl_b32 s39, s36, 6
    s_add_u32 s38, s38, s39
    v_add_u32 v61, s38, v2
    v_mul_u32_u24 v61, 1280, v61
    v_xor_b32 v62, v3, v60
    v_xor_b32 v63, 4, v62
    v_lshl_add_u32 v62, v62, 4, v61
    v_lshl_add_u32 v63, v63, 4, v61
    """)
    for i in range(8):
        A(f"v_add_u32 v{VA+i}, {10240*i - 1024*(i % 4)}, v{62 + (i & 1)}")
    A(f"""
    s_lshl_b32 s39, s36, 4
    v_add_u32 v61, s39, v2                 ; k row
    v_mul_u32_u24 v61, 3456, v61
    v_and_b32 v62, 1, v60
    v_lshlrev_b32 v62, 2, v62
    v_xor_b32 v62, v62, v3
    v_lshl_add_u32 v61, v62, 4, v61
    s_lshl_b32 s39, s35, 7
    v_add_u32 v{VB}, s39, v61
    v_add_u32 v{VB+1}, {8*3456 - 1024}, v{VB}
    s_lshl_b32 s40, s36, 13                ; lw*8192
    s_lshl_b32 s41, s36, 11                ; lw*2048
    ; colsum read address: gu = lw&1, half = lw>>1 ; c = l%4 + 4half ; row = l/4
    v_lshrrev_b32 v61, 2, v1               ; row
    v_and_b32 v62, 3, v1
    s_lshr_b32 s39, s36, 1
    s_lshl_b32 s39, s39, 2
    v_add_u32 v62, s39, v62                ; c
    v_bfe_u32 v63, v61, 1, 1
    v_lshlrev_b32 v63, 2, v63
    v_xor_b32 v62, v62, v63
    v_lshlrev_b32 v62, 4, v62
    v_lshl_add_u32 v{CA}, v61, 7, v62
    s_and_b32 s39, s36, 1
    s_lshl_b32 s39, s39, 13
    s_add_u32 s39, s39, {OFF_BG}
    v_add_u32 v{CA}, s39, v{CA}
    v_add_u32 v{CA+1}, {2*SLOT}, v{CA}
    """)
    for i in range(8): A(f"v_mov_b32 v{CS+i}, 0")
    def issue(st):
        slot = st % 3
        A(f"s_mov_b32 s42, {st*128}")
        A(f"s_mov_b32 s43, {st*64*3456}")
        A(f"s_add_u32 m0, s41, {slot*SLOT + OFF_BG}")
        for i in range(2):
            A(f"buffer_load_dwordx4 v{VB+i}, s[12:15], s43 offen offset:{1024*i} lds")
        A(f"s_add_u32 m0, s41, {slot*SLOT + OFF_BU}")
        for i in range(2):
            A(f"buffer_load_dwordx4 v{VB+i}, s[16:19], s43 offen offset:{1024*i} lds")
        for hh in range(2):
            A(f"s_add_u32 m0, s40, {slot*SLOT + hh*4096}")
            for i in range(4):
                A(f"buffer_load_dwordx4 v{VA+4*hh+i}, s[8:11], s42 offen offset:{1024*i} lds")
    def colsum(st):
        slot = st % 3
        ca = CA + (1 if slot == 2 else 0)
        o = SLOT if slot == 1 else 0
        for i in range(4):
            A(f"ds_read_b128 v[{TMP+4*i}:{TMP+4*i+3}], v{ca} offset:{o + 2048*i}")
        for i in range(4):
            A(f"s_waitcnt lgkmcnt({3-i})")
            for r in range(4):
                A(f"v_lshlrev_b32 v{TMP+16}, 16, v{TMP+4*i+r}")
                A(f"v_and_b32 v{TMP+17}, 0xffff0000, v{TMP+4*i+r}")
                A(f"v_add_f32 v{CS+2*r}, v{CS+2*r}, v{TMP+16}")
                A(f"v_add_f32 v{CS+2*r+1}, v{CS+2*r+1}, v{TMP+17}")
    issue(0); issue(1); issue(2)
    A("s_waitcnt vmcnt(24)")
    A("s_barrier")
    for st in range(NST):
        colsum(st)
        if st < NST-1:
            infl = 12 if st + 2 < NST else 0
            A(f"s_waitcnt vmcnt({infl})")
            A("s_barrier")
            if st + 3 < NST: issue(st + 3)
    for i in range(8):
        A(f"v_add_f32_dpp v{CS+i}, v{CS+i}, v{CS+i} row_ror:4 row_mask:0xf bank_mask:0xf")
    for i in range(8):
        A(f"v_add_f32_dpp v{CS+i}, v{CS+i}, v{CS+i} row_ror:8 row_mask:0xf bank_mask:0xf")
    for sw in ("v_permlane16_swap_b32", "v_permlane32_swap_b32"):
        for i in range(8): A(f"v_mov_b32 v{TMP+i}, v{CS+i}")
        for i in range(8): A(f"{sw} v{CS+i}, v{TMP+i}")
        for i in range(8): A(f"v_add_f32 v{CS+i}, v{CS+i}, v{TMP+i}")
    A(f"""
    v_and_b32 v62, 3, v1
    v_lshlrev_b32 v62, 5, v62
    s_lshr_b32 s39, s36, 1
    s_lshl_b32 s39, s39, 7
    s_and_b32 s38, s36, 1
    s_lshl_b32 s38, s38, 8
    s_add_u32 s39, s39, s38
    s_add_u32 s39, s39, {CS_OFF}
    v_add_u32 v62, s39, v62
    ds_write_b128 v62, v[{CS}:{CS+3}]
    ds_write_b128 v62, v[{CS+4}:{CS+7}] offset:16
    s_waitcnt lgkmcnt(0)
    s_barrier
    """)

import struct
def f32bits(x): return struct.unpack("<I", struct.pack("<f", x))[0]

def gen_gemm1():
    A = Asm()
    A("""
    s_cmp_ge_u32 s2, 216
    s_cbranch_scc1 L_g1_end
    """)
    gen_gemm1_body(A, "L_g1_end")
    A("L_g1_end:")
    return kernel_wrap("gemm1_kernel", A.text(), vgpr=256), (216, 512, G1_LDS)

if __name__ == "__main__":
    chk()
```

```python
from asmlib import *
from layout import *

RING = 20480
ZSZ = 3072
G2_WSZ = RING + ZSZ
NSTEP = 14

def chk():
    for j in range(2):
        ad = []
        for l in range(64):
            g, i = l // 16, l % 16
            rho = 16*(g >> 1) + 4*(g & 1) + i//4 + 8*j
            ad.append(rho*160 + (i % 4)*8)
        assert b64_conflicts(ad) == 2
    print("ok")

def gen_gemm2_body(A, lds_base=0, zwait=None, tile_sgpr="s2"):
    A(f"""
    s_load_dwordx2 s[4:5], s[0:1], 0       ; x
    s_load_dwordx4 s[28:31], s[0:1], 72
    s_load_dwordx2 s[6:7], s[0:1], 96      ; ws
    s_and_b32 s32, {tile_sgpr}, 7          ; xcd
    s_lshr_b32 s33, {tile_sgpr}, 3         ; slot
    s_lshr_b32 s34, s32, 1
    s_lshl_b32 s34, s34, 3
    s_lshr_b32 s35, s33, 2
    s_add_u32 s34, s34, s35                ; mt
    s_and_b32 s35, s32, 1
    s_lshl_b32 s35, s35, 2
    s_and_b32 s33, s33, 3
    s_add_u32 s35, s35, s33                ; nt
    s_mul_i32 s36, s3, {G2_WSZ}
    s_add_u32 s36, s36, {lds_base}
    s_waitcnt lgkmcnt(0)
    """)
    srd(A, 8, 4, SZ_X)
    srd(A, 12, 28, SZ_WD)
    srd(A, 16, 30, SZ_X)
    srd(A, 20, 6, SZ_H, H_OFF)
    srd(A, 24, 6, SZ_ST, ST_OFF)
    srd(A, 44, 6, SZ_ZT, ZT_OFF)
    HV, WV, WA, XO, ZA = 4, 8, 13, 14, 15
    XR, STR = 16, 26
    HS, ACC, WF = 32, 96, 176
    T = 216
    A(f"""
    v_and_b32 v2, 15, v1                   ; i / token
    v_lshrrev_b32 v3, 4, v1                ; g
    s_lshl_b32 s37, s34, 6
    s_lshl_b32 s38, s3, 4
    s_add_u32 s37, s37, s38
    v_add_u32 v{T}, s37, v2
    v_lshlrev_b32 v{T+1}, 3, v{T}
    buffer_load_dwordx2 v[{STR}:{STR+1}], v{T+1}, s[24:27], 0 offen
    v_mul_u32_u24 v{XO}, 1280, v{T}
    v_lshl_add_u32 v{XO}, v3, 3, v{XO}
    s_mul_i32 s38, s35, 160
    v_add_u32 v{XO}, s38, v{XO}
    """)
    for nb in range(5):
        A(f"buffer_load_dwordx2 v[{XR+2*nb}:{XR+2*nb+1}], v{XO}, s[8:11], 0 offen offset:{32*nb}")
    def zload():
        A(f"""
        v_lshrrev_b32 v{T}, 1, v1
        v_lshlrev_b32 v{T}, 12, v{T}
        v_and_b32 v{T+1}, 1, v1
        v_lshl_add_u32 v{T}, v{T+1}, 4, v{T}
        s_mul_i32 s38, s35, {80*4096}
        s_lshl_b32 s39, s37, 1
        s_add_u32 s38, s38, s39
        s_add_u32 m0, s36, {RING}
        """)
        sc = " sc1" if zwait else ""
        for i in range(3):
            A(f"buffer_load_dwordx4 v{T}, s[44:47], s38 offen{sc} lds")
            if i < 2:
                A(f"s_add_u32 m0, m0, 1024")
                A(f"s_add_u32 s38, s38, {32*4096}")
    if zwait is None: zload()
    A(f"""
    ; z tr-read addr: row = 4g + i/4 (+16nb), byte (i%4)*8
    v_lshrrev_b32 v{T+2}, 2, v2
    v_lshl_add_u32 v{T+3}, v3, 2, v{T+2}
    v_lshlrev_b32 v{ZA}, 5, v{T+3}
    v_and_b32 v{T+3}, 3, v2
    v_lshl_add_u32 v{ZA}, v{T+3}, 3, v{ZA}
    v_add_u32 v{ZA}, s36, v{ZA}
    v_add_u32 v{ZA}, {RING}, v{ZA}
    v_lshrrev_b32 v{WA}, 1, v3
    v_lshlrev_b32 v{WA}, 4, v{WA}
    v_and_b32 v{T+4}, 1, v3
    v_lshl_add_u32 v{WA}, v{T+4}, 2, v{WA}
    v_add_u32 v{WA}, v{WA}, v{T+2}
    v_mul_u32_u24 v{WA}, 160, v{WA}
    v_lshl_add_u32 v{WA}, v{T+3}, 3, v{WA}
    v_add_u32 v{WA}, s36, v{WA}
    ; h voffsets
    v_lshlrev_b32 v{HV}, 4, v1
    v_add_u32 v{HV+1}, {54*1024}, v{HV}
    v_add_u32 v{HV+2}, {2*54*1024}, v{HV}
    v_add_u32 v{HV+3}, {3*54*1024}, v{HV}
    s_mul_i32 s40, s34, {4*54*1024}
    s_lshl_b32 s41, s3, 10
    s_add_u32 s40, s40, s41
    s_mul_i32 s41, s3, 40960
    s_mul_i32 s38, s35, 160
    """)
    for i in range(5):
        A(f"""
        v_add_u32 v{T}, {64*i}, v1
        v_mul_u32_u24 v{T+1}, 205, v{T}
        v_lshrrev_b32 v{T+1}, 11, v{T+1}       ; rho
        v_mul_u32_u24 v{T+2}, 10, v{T+1}
        v_sub_u32 v{T+2}, v{T}, v{T+2}         ; chunk
        v_and_b32 v{T+3}, 0x13, v{T+1}
        v_bfe_u32 v{T+4}, v{T+1}, 2, 1
        v_lshl_or_b32 v{T+3}, v{T+4}, 3, v{T+3}
        v_bfe_u32 v{T+4}, v{T+1}, 3, 1
        v_lshl_or_b32 v{T+3}, v{T+4}, 2, v{T+3}  ; k
        v_mul_u32_u24 v{T+3}, 1280, v{T+3}
        v_lshl_add_u32 v{T+3}, v{T+2}, 4, v{T+3}
        v_add_u32 v{T+3}, s38, v{T+3}
        v_subrev_u32 v{WV+i}, {1024*(i % 4)}, v{T+3}
        """)
    def issueW(j):
        L = []
        slot = j % 4
        L.append(f"s_add_u32 m0, s36, {slot*5120}")
        for i in range(4):
            L.append(f"buffer_load_dwordx4 v{WV+i}, s[12:15], s41 offen offset:{1024*i} lds")
        L.append(f"s_add_u32 m0, s36, {slot*5120 + 4096}")
        L.append(f"buffer_load_dwordx4 v{WV+4}, s[12:15], s41 offen lds")
        L.append(f"s_add_u32 s41, s41, {4*40960}")
        return L
    def issueH(j):
        L = []
        hs = HS + 16*(j % 4)
        if j == NSTEP-1:
            L.append("s_cmp_lt_u32 s3, 2")
            L.append("s_cselect_b32 s40, s40, 0x40000000")
        for t in range(4):
            L.append(f"buffer_load_dwordx4 v[{hs+4*t}:{hs+4*t+3}], v{HV+t}, s[20:23], s40 offen")
        L.append(f"s_add_u32 s40, s40, 4096")
        return L
    def group(i):
        L = []
        if i + 4 < NSTEP: L += issueW(i + 4)
        if i + 3 < NSTEP: L += issueH(i + 3)
        return L
    nvm = lambda L: sum(1 for x in L if x.startswith("buffer_"))
    def wreads(j):
        slot = j % 4
        wf = WF + 20*(j & 1)
        L = []
        for nb in range(5):
            for jj in range(2):
                L.append(f"ds_read_b64_tr_b16 v[{wf+4*nb+2*jj}:{wf+4*nb+2*jj+1}], v{WA} offset:{slot*5120 + jj*1280 + nb*32}")
        return L
    for l in issueW(0): A(l)
    for i in (-3, -2, -1):
        for l in group(i): A(l)
    A("s_waitcnt vmcnt(27)")
    for l in wreads(0): A(l)
    for i in range(NSTEP):
        outstanding = nvm(group(i-2)) + nvm(group(i-1))
        A(f"s_waitcnt vmcnt({outstanding}) lgkmcnt(0)")
        fill = (wreads(i+1) if i + 1 < NSTEP else [])
        g = group(i)
        hs = HS + 16*(i % 4); wf = WF + 20*(i & 1)
        k = 0
        seq = []
        gi = 0
        for mi in range(20):
            nb, tb = mi // 4, mi % 4
            ac = ACC + (tb*5 + nb)*4
            src = "0" if i == 0 else f"v[{ac}:{ac+3}]"
            A(f"v_mfma_f32_16x16x32_bf16 v[{ac}:{ac+3}], v[{wf+4*nb}:{wf+4*nb+3}], v[{hs+4*tb}:{hs+4*tb+3}], {src}")
            if mi % 2 == 0 and mi // 2 < len(fill): A(fill[mi // 2])
            if mi % 2 == 1:
                done = False
                while gi < len(g) and not done:
                    A(g[gi]); done = g[gi].startswith("buffer_"); gi += 1
        while gi < len(g): A(g[gi]); gi += 1
    A(f"""
    v_lshlrev_b32 v{T}, 4, v1
    v_add_u32 v{T+1}, s36, v{T}
    s_nop 4
    """)
    for w in range(4):
        A(f"s_cmp_lg_u32 s3, {w}")
        A(f"s_cbranch_scc1 L_g2_red_{w}")
        for tb in range(4):
            if tb == w: continue
            sl = (tb - w - 1) & 3
            for nb in range(5):
                ac = ACC + (tb*5 + nb)*4
                A(f"ds_write_b128 v{T+1}, v[{ac}:{ac+3}] offset:{(sl*5 + nb)*1024}")
        for nb in range(5):
            ac = ACC + (w*5 + nb)*4
            for r in range(4): A(f"v_mov_b32 v{HS+4*nb+r}, v{ac+r}")
        A(f"L_g2_red_{w}:")
    if zwait is not None:
        zwait(A)
        zload()
    A(f"""
    s_waitcnt vmcnt(0) lgkmcnt(0)
    s_barrier
    """)
    for sl in range(3):
        A(f"""
        s_sub_u32 s38, s3, {1+sl}
        s_and_b32 s38, s38, 3
        s_mul_i32 s38, s38, {G2_WSZ}
        s_add_u32 s38, s38, {lds_base}
        v_add_u32 v{T+2+sl}, s38, v{T}
        """)
        for nb in range(5):
            A(f"ds_read_b128 v[{ACC+(sl*5+nb)*4}:{ACC+(sl*5+nb)*4+3}], v{T+2+sl} offset:{(sl*5+nb)*1024}")
    ZR = WF
    for nb in range(5):
        A(f"ds_read_b64_tr_b16 v[{ZR+2*nb}:{ZR+2*nb+1}], v{ZA} offset:{512*nb}")
    A(f"""
    v_rcp_f32 v{STR+1}, v{STR+1}
    s_waitcnt lgkmcnt(0)
    """)
    for nb in range(5):
        for sl in range(3):
            for p in range(2):
                a = HS + 4*nb + 2*p; b = ACC + (sl*5+nb)*4 + 2*p
                A(f"v_pk_add_f32 v[{a}:{a+1}], v[{a}:{a+1}], v[{b}:{b+1}]")
        for p in range(2):
            xr, zr = XR + 2*nb + p, ZR + 2*nb + p
            a = HS + 4*nb + 2*p
            A(f"""
            v_lshlrev_b32 v{T+8}, 16, v{xr}
            v_and_b32 v{T+9}, 0xffff0000, v{xr}
            v_lshlrev_b32 v{T+10}, 16, v{zr}
            v_and_b32 v{T+11}, 0xffff0000, v{zr}
            v_add_f32 v{a}, v{a}, v{T+8}
            v_add_f32 v{a+1}, v{a+1}, v{T+9}
            v_sub_f32 v{T+8}, v{T+8}, v{STR}
            v_sub_f32 v{T+9}, v{T+9}, v{STR}
            v_mul_f32 v{T+10}, v{T+10}, v{STR+1}
            v_mul_f32 v{T+11}, v{T+11}, v{STR+1}
            v_fmac_f32 v{a}, v{T+8}, v{T+10}
            v_fmac_f32 v{a+1}, v{T+9}, v{T+11}
            v_cvt_pk_bf16_f32 v{xr}, v{a}, v{a+1}
            """)
        A(f"buffer_store_dwordx2 v[{XR+2*nb}:{XR+2*nb+1}], v{XO}, s[16:19], 0 offen offset:{32*nb}")

def gen_gemm2():
    A = Asm()
    A("""
    s_cmp_ge_u32 s2, 256
    s_cbranch_scc1 L_g2_end
    v_lshrrev_b32 v2, 6, v0
    v_and_b32 v1, 63, v0
    v_readfirstlane_b32 s3, v2
    """)
    gen_gemm2_body(A)
    A("L_g2_end:")
    return kernel_wrap("gemm2_kernel", A.text(), vgpr=232), (256, 256, 4*G2_WSZ)

if __name__ == "__main__":
    chk()
```

```python
from asmlib import *
from layout import *

def gen_prep():
    A = Asm()
    NWG_KV, NWG_LN = 160, 128
    A(f"""
    s_cmp_ge_u32 s2, {NWG_KV+NWG_LN}
    s_cbranch_scc1 L_prep_end
    s_load_dwordx4 s[4:7], s[0:1], 0       ; q, k
    s_load_dwordx4 s[8:11], s[0:1], 16     ; v, shift_k
    s_load_dwordx2 s[12:13], s[0:1], 96    ; ws
    v_lshrrev_b32 v1, 6, v0
    v_and_b32 v2, 63, v0                   ; lane
    v_readfirstlane_b32 s3, v1             ; wave
    s_waitcnt lgkmcnt(0)
    s_cmp_ge_u32 s2, {NWG_KV}
    s_cbranch_scc1 L_prep_ln
    """)
    srd(A, 16, 6, SZ_X)
    srd(A, 20, 8, SZ_X)
    srd(A, 24, 10, 640*8)
    srd(A, 28, 12, SZ_KR, KR_OFF)
    A(f"""
    s_mul_hi_u32 s32, s2, {(2**32+4)//5}
    s_mul_i32 s33, s32, 5
    s_sub_u32 s33, s2, s33                 ; cb
    s_lshl_b32 s34, s32, 6
    s_lshl_b32 s35, s3, 4
    s_add_u32 s34, s34, s35                ; t0
    s_sub_u32 s35, s34, 4
    s_mul_i32 s35, s35, 1280
    s_lshl_b32 s36, s33, 8
    s_add_u32 s35, s35, s36                ; + cb*256
    v_lshlrev_b32 v3, 2, v2
    v_add_u32 v4, s35, v3
    v_add_u32 v5, 5120, v4
    v_add_u32 v6, 10240, v4
    v_add_u32 v7, 15360, v4
    v_add_u32 v8, 20480, v4
    s_lshl_b32 s36, s33, 10                ; cb*128*8
    v_lshlrev_b32 v9, 4, v2
    v_add_u32 v9, s36, v9
    buffer_load_dwordx4 v[12:15], v9, s[24:27], 0 offen
    """)
    KR, VR = 16, 36
    for r in range(20):
        A(f"buffer_load_dword v{KR+r}, v{4+r//4}, s[16:19], 0 offen offset:{(r%4)*1280}")
    for i in range(17):
        r = i + 3
        A(f"buffer_load_dword v{VR+i}, v{4+r//4}, s[20:23], 0 offen offset:{(r%4)*1280}")
    A(f"""
    s_lshl_b32 s36, s33, 20                ; cb*128*8192
    s_lshl_b32 s37, s34, 1
    s_add_u32 s36, s36, s37
    v_lshlrev_b32 v10, 14, v2              ; lane*2*8192
    v_add_u32 v10, s36, v10
    s_mov_b32 s40, 4096
    s_mov_b32 s41, 8192
    s_mov_b32 s42, 12288
    s_waitcnt vmcnt(0)
    """)
    KF, KVF, SK, OUT = 56, 76, 96, 100
    for c in range(2):
        A(f"v_lshlrev_b32 v{SK+0}, 16, v{12+2*c}")
        A(f"v_and_b32 v{SK+1}, 0xffff0000, v{12+2*c}")
        A(f"v_lshlrev_b32 v{SK+2}, 16, v{13+2*c}")
        A(f"v_and_b32 v{SK+3}, 0xffff0000, v{13+2*c}")
        for r in range(20):
            if c == 0: A(f"v_lshlrev_b32 v{KF+r}, 16, v{KR+r}")
            else: A(f"v_and_b32 v{KF+r}, 0xffff0000, v{KR+r}")
        for i in range(17):
            A(f"v_mul_f32 v{KVF+i}, v{KF+i}, v{SK+3}")
            A(f"v_fmac_f32 v{KVF+i}, v{KF+i+1}, v{SK+2}")
            A(f"v_fmac_f32 v{KVF+i}, v{KF+i+2}, v{SK+1}")
            A(f"v_fmac_f32 v{KVF+i}, v{KF+i+3}, v{SK+0}")
            if c == 0: A(f"v_lshlrev_b32 v11, 16, v{VR+i}")
            else: A(f"v_and_b32 v11, 0xffff0000, v{VR+i}")
            A(f"v_mul_f32 v{KVF+i}, v{KVF+i}, v11")
        o = OUT + 16*c
        for gi in range(2):
            for j in range(4):
                A(f"v_cvt_pk_bf16_f32 v{o+gi*4+j}, v{KVF+8*gi+8-2*j}, v{KVF+8*gi+7-2*j}")
                A(f"v_cvt_pk_bf16_f32 v{o+8+gi*4+j}, v{KVF+8*gi+7-2*j}, v{KVF+8*gi+6-2*j}")
        so0 = "0" if c == 0 else "s41"
        so1 = "s40" if c == 0 else "s42"
        A(f"buffer_store_dwordx4 v[{o}:{o+3}], v10, s[28:31], {so0} offen")
        A(f"buffer_store_dwordx4 v[{o+4}:{o+7}], v10, s[28:31], {so0} offen offset:16")
        A(f"buffer_store_dwordx4 v[{o+8}:{o+11}], v10, s[28:31], {so1} offen")
        A(f"buffer_store_dwordx4 v[{o+12}:{o+15}], v10, s[28:31], {so1} offen offset:16")
    A("s_branch L_prep_end")
    A("L_prep_ln:")
    srd(A, 16, 4, SZ_X)
    srd(A, 20, 12, SZ_X, XN_OFF)
    srd(A, 24, 12, SZ_ST, ST_OFF)
    A(f"""
    s_sub_u32 s32, s2, {NWG_KV}
    s_lshl_b32 s32, s32, 4
    s_lshl_b32 s33, s3, 2
    s_add_u32 s32, s32, s33
    v_lshrrev_b32 v3, 4, v2                ; r
    v_add_u32 v72, s32, v3
    v_lshlrev_b32 v72, 3, v72
    s_mul_i32 s32, s32, 1280
    v_and_b32 v4, 15, v2                   ; j
    v_mul_u32_u24 v3, 1280, v3
    v_lshlrev_b32 v4, 4, v4
    v_add3_u32 v3, v3, v4, s32
    """)
    for i in range(5):
        A(f"buffer_load_dwordx4 v[{8+4*i}:{11+4*i}], v3, s[16:19], 0 offen offset:{256*i}")
    A("s_waitcnt vmcnt(0)")
    XF = 32
    for i in range(20):
        A(f"v_lshlrev_b32 v{XF+2*i}, 16, v{8+i}")
        A(f"v_and_b32 v{XF+2*i+1}, 0xffff0000, v{8+i}")
    A(f"v_add_f32 v4, v{XF}, v{XF+1}\nv_add_f32 v5, v{XF+2}, v{XF+3}\nv_add_f32 v6, v{XF+4}, v{XF+5}\nv_add_f32 v7, v{XF+6}, v{XF+7}")
    for i in range(8, 40):
        A(f"v_add_f32 v{4+(i%4)}, v{4+(i%4)}, v{XF+i}")
    A("v_add_f32 v4, v4, v5\nv_add_f32 v6, v6, v7\nv_add_f32 v4, v4, v6")
    def rowsum(reg):
        for sh in (8, 4, 2, 1):
            A("s_nop 1")
            A(f"v_add_f32_dpp v{reg}, v{reg}, v{reg} row_ror:{sh} row_mask:0xf bank_mask:0xf")
    rowsum(4)
    A(f"""
    v_mul_f32 v4, {1.0/640!r}, v4
    v_mov_b32 v5, 0
    v_mov_b32 v6, 0
    """)
    for i in range(40):
        A(f"v_sub_f32 v7, v{XF+i}, v4")
        A(f"v_fmac_f32 v{5+(i%2)}, v7, v7")
    A("v_add_f32 v5, v5, v6")
    rowsum(5)
    A(f"""
    v_mul_f32 v5, {1.0/640!r}, v5
    v_cvt_pk_bf16_f32 v6, v4, v5
    v_lshlrev_b32 v4, 16, v6
    v_and_b32 v5, 0xffff0000, v6
    v_add_f32 v5, 0x3727c5ac, v5           ; + 1e-5
    v_cvt_pk_bf16_f32 v5, v5, v5
    v_lshlrev_b32 v5, 16, v5
    v_sqrt_f32 v5, v5
    s_nop 0
    v_cvt_pk_bf16_f32 v5, v5, v5
    v_lshlrev_b32 v5, 16, v5
    v_mov_b32 v74, v4
    v_mov_b32 v75, v5
    v_rcp_f32 v5, v5
    buffer_store_dwordx2 v[74:75], v72, s[24:27], 0 offen
    """)
    for i in range(20):
        A(f"v_sub_f32 v{XF+2*i}, v{XF+2*i}, v4")
        A(f"v_sub_f32 v{XF+2*i+1}, v{XF+2*i+1}, v4")
        A(f"v_cvt_pk_bf16_f32 v6, v{XF+2*i}, v{XF+2*i+1}")
        A(f"v_lshlrev_b32 v7, 16, v6")
        A(f"v_and_b32 v6, 0xffff0000, v6")
        A(f"v_mul_f32 v7, v7, v5")
        A(f"v_mul_f32 v6, v6, v5")
        A(f"v_cvt_pk_bf16_f32 v{8+i}, v7, v6")
    for i in range(5):
        A(f"buffer_store_dwordx4 v[{8+4*i}:{11+4*i}], v3, s[20:23], 0 offen offset:{256*i}")
    A("L_prep_end:")
    return kernel_wrap("prep_kernel", A.text(), vgpr=132), (NWG_KV+NWG_LN, 256, 0)
```

```python
S, D, F = 2048, 640, 1728
SZ_X = S*D*2
XN_OFF = 0
KR_OFF = SZ_X
SZ_KR = D*2*4096
ZT_OFF = KR_OFF + SZ_KR
SZ_ZT = D*4096
H_OFF = ZT_OFF + SZ_ZT
SZ_H = S*F*2
ST_OFF = H_OFF + SZ_H
SZ_ST = S*8
SZ_W1 = D*F*2
SZ_WD = F*D*2
SZ_SSM = D*S*2
```

```python
import sys
from build import *
from asmlib import *
from k_prep import gen_prep
from k_conv import gen_conv
from k_gemm1 import gen_gemm1
from k_gemm2 import gen_gemm2
t, l = gen_prep()
t2, l2 = gen_conv(4)
t3, l3 = gen_gemm1()
t4, l4 = gen_gemm2()
e = kernel_wrap("empty_kernel", "s_nop 0\n", vgpr=8)
base = [("prep_kernel", t, l), ("gemm1_kernel", t3, l3), ("conv_kernel", t2, l2), ("gemm2_kernel", t4, l4)]
build(base + [("empty_kernel", e, (256, 64, 0))]*2, "t4_e2.s")
build(base + [("empty_kernel", e, (256, 64, 0))]*4, "t4_e4.s")
```

```python
class Asm:
    def __init__(self):
        self.lines = []
        self._lbl = 0
    def __call__(self, s):
        for l in s.strip("\n").split("\n"):
            self.lines.append(l.strip() if not l.strip().endswith(":") else l.strip())
    def c(self, s): self.lines.append("; " + s)
    def label(self, base="L"):
        self._lbl += 1
        return f"{base}_{self._lbl}"
    def text(self, verbose=False):
        import hazard
        return "\n".join(hazard.fix(self.lines, verbose)) + "\n"

def v(a, n=1):
    return f"v{a}" if n == 1 else f"v[{a}:{a+n-1}]"
def s(a, n=1):
    return f"s{a}" if n == 1 else f"s[{a}:{a+n-1}]"
def a_(a, n=1):
    return f"a{a}" if n == 1 else f"a[{a}:{a+n-1}]"

def srd(A, d, b, nbytes, off=0):
    if off:
        A(f"s_add_u32 s{d}, s{b}, {off}")
        A(f"s_addc_u32 s{d+1}, s{b+1}, 0")
    else:
        A(f"s_mov_b32 s{d}, s{b}")
        A(f"s_mov_b32 s{d+1}, s{b+1}")
    A(f"s_mov_b32 s{d+2}, {nbytes}")
    A(f"s_mov_b32 s{d+3}, 0x00020000")

def kernel_wrap(name, body, vgpr, sgpr=102, agpr=0):
    accum = (vgpr + 3) // 4 * 4
    nfv = accum + agpr if agpr else vgpr
    return f""".text
.globl {name}
.p2align 8
.type {name},@function
{name}:
{body}s_endpgm
.section .rodata,"a"
.p2align 6
.amdhsa_kernel {name}
  .amdhsa_next_free_vgpr {nfv}
  .amdhsa_next_free_sgpr {sgpr}
  .amdhsa_accum_offset {accum}
  .amdhsa_group_segment_fixed_size 0
  .amdhsa_kernarg_size 104
  .amdhsa_user_sgpr_count 2
  .amdhsa_user_sgpr_kernarg_segment_ptr 1
  .amdhsa_system_sgpr_workgroup_id_x 1
.end_amdhsa_kernel
"""

B128_GROUPS = [
    list(range(0,4))+list(range(12,16))+list(range(20,28)),
    list(range(4,12))+list(range(16,20))+list(range(28,32)),
    list(range(32,36))+list(range(44,48))+list(range(52,60)),
    list(range(36,44))+list(range(48,52))+list(range(60,64)),
]
def b128_conflicts(addrs):
    tot = 0
    for g in B128_GROUPS:
        banks = {}
        for l in g:
            a = addrs[l]
            assert a % 16 == 0
            q = (a // 16) % 16
            banks.setdefault(q, set()).add(a)
        tot += max(len(x) for x in banks.values())
    return tot
def b64_conflicts(addrs):
    tot = 0
    for g in (range(0,32), range(32,64)):
        banks = {}
        for l in g:
            a = addrs[l]
            assert a % 8 == 0
            q = (a // 8) % 32
            banks.setdefault(q, set()).add(a)
        tot += max(len(x) for x in banks.values())
    return tot

import os
TS_OFF = 32 << 20
DEBUG_TS = False
def ts(A, i):
    if DEBUG_TS: A(f"s_memrealtime s[{80+2*i}:{81+2*i}]")
def tc(A, i):
    if DEBUG_TS: A(f"s_memtime s[{80+2*i}:{81+2*i}]")
def ts_store(A, kidx, n, wave_sgpr, ws_lo, vtmp, wgs="s2"):
    if not DEBUG_TS: return
    A(f"s_waitcnt vmcnt(0)")
    ts(A, n)
    A(f"""
    s_waitcnt lgkmcnt(0)
    s_add_u32 s76, s{ws_lo}, {TS_OFF + kidx*(1<<20)}
    s_addc_u32 s77, s{ws_lo+1}, 0
    s_mov_b32 s78, 0x100000
    s_mov_b32 s79, 0x00020000
    s_lshl_b32 s75, {wgs}, 4
    s_add_u32 s75, s75, s{wave_sgpr}
    s_lshl_b32 s75, s75, 5
    v_mov_b32 v{vtmp+1}, 0
    """)
    for i in list(range(n + 1)) + [6, 7]:
        A(f"v_mov_b32 v{vtmp}, s{80+2*i}")
        A(f"buffer_store_dword v{vtmp}, v{vtmp+1}, s[76:79], s75 offen offset:{4*i}")
        A("s_nop 1")
```

```python
from asmlib import *
from layout import *

FB = [0, 4176, 8336, 12496]
G0 = 16656 + 512
G1 = G0 + 4640
CONV_WSZ = G1 + 4096 + 16

def chk():
    def faddr(l):
        b, kq = l % 16, l // 16
        j = (b + 1) % 4
        y = -8*kq + 8*((b-3)//4) + 32
        return FB[j] + 2*y
    def gaddr(l):
        n, kq = l % 16, l // 16
        return (G0 if n & 1 else G1) + 16*(4*(n >> 1) + kq)
    print("F conflicts", b128_conflicts([faddr(l) for l in range(64)]), "G", b128_conflicts([gaddr(l) for l in range(64)]))

def mfma_order():
    order = []
    for p in range(8):
        cs = list(range(8 - p))
        order += [(p, c) for c in cs]
    tail = [(5,2),(5,1),(5,0),(6,1),(6,0),(7,0)]
    head = [x for x in order if x[0] <= 3]
    mid = [(4,0),(4,3),(4,1),(4,2)]
    res = head + mid + tail
    assert sorted(res) == sorted(order)
    for a, b in zip(res, res[1:]): assert sum(a) != sum(b), (a, b)
    return res

def conv_setup(A, V, SG):
    L = V["lane"]; t0, t1, t2 = V["t0"], V["t1"], V["t2"]
    ldsb = SG["ldsb"]
    A(f"""
    v_and_b32 v{t0}, 15, v{L}              ; b / n
    v_lshrrev_b32 v{t1}, 4, v{L}           ; kq / g
    v_add_u32 v{t2}, 1, v{t0}
    v_and_b32 v{V['fa']}, 3, v{t2}         ; j
    v_lshrrev_b32 v{t2}, 2, v{t2}
    v_lshlrev_b32 v{t2}, 4, v{t2}          ; *16 bytes
    v_cmp_ne_u32 vcc, 0, v{V['fa']}
    v_mul_u32_u24 v{V['fa']}, 4160, v{V['fa']}
    v_add_u32 v{V['fa']}, v{V['fa']}, v{t2}
    v_cndmask_b32 v{t2}, 0, 16, vcc
    v_add_u32 v{V['fa']}, v{V['fa']}, v{t2}
    v_lshlrev_b32 v{t2}, 4, v{t1}
    v_sub_u32 v{V['fa']}, v{V['fa']}, v{t2}
    v_add_u32 v{V['fa']}, 48, v{V['fa']}       ; +64 -16
    v_add_u32 v{V['fa']}, s{ldsb}, v{V['fa']}
    v_and_b32 v{V['ga']}, 1, v{t0}
    v_cmp_eq_u32 vcc, 1, v{V['ga']}
    v_lshrrev_b32 v{V['ga']}, 1, v{t0}
    v_lshlrev_b32 v{V['ga']}, 6, v{V['ga']}
    v_add_u32 v{V['ga']}, v{V['ga']}, v{t2}
    v_mov_b32 v{t2}, {G1-448}
    v_mov_b32 v{V['ka']}, {G0-448}
    v_cndmask_b32 v{t2}, v{t2}, v{V['ka']}, vcc
    v_add3_u32 v{V['ga']}, v{V['ga']}, v{t2}, s{ldsb}
    ; epilogue: t_l = 64g + 2b ; kv dword at G0 + 2*(t + 6 - 2*(t%8)) ; t%8 = 2*(b&3)
    v_lshlrev_b32 v{t2}, 7, v{t1}          ; 128 g
    v_lshl_add_u32 v{V['zo']}, v{t0}, 2, v{t2}
    v_and_b32 v{t2}, 3, v{t0}
    v_lshlrev_b32 v{t2}, 3, v{t2}          ; 2*2*(2*(b&3)) = 8*(b&3)
    v_sub_u32 v{V['ka']}, v{V['zo']}, v{t2}
    v_add_u32 v{V['ka']}, {G0+12}, v{V['ka']}
    v_add_u32 v{V['ka']}, s{ldsb}, v{V['ka']}
    v_lshlrev_b32 v{V['l16']}, 4, v{L}
    ; head fix: copy j=l/16, dword w=l%16 -> global dword (w+j-16) if >=0 ; LDS addr FB[j]+4w
    v_add_u32 v{t2}, v{t0}, v{t1}
    v_subrev_u32 v{t2}, 16, v{t2}
    v_lshlrev_b32 v{V['ho']}, 2, v{t2}
    v_cmp_gt_i32 vcc, 0, v{t2}
    v_mov_b32 v{t2}, 0x7fff0000
    v_cndmask_b32 v{V['ho']}, v{V['ho']}, v{t2}, vcc
    v_cmp_ne_u32 vcc, 0, v{t1}
    v_mul_u32_u24 v{V['hl']}, 4160, v{t1}
    v_cndmask_b32 v{t2}, 0, 16, vcc
    v_add_u32 v{V['hl']}, v{V['hl']}, v{t2}
    v_lshl_add_u32 v{V['hl']}, v{t0}, 2, v{V['hl']}
    v_add_u32 v{V['hl']}, s{ldsb}, v{V['hl']}
    v_cmp_gt_u32 vcc, 32, v{L}
    v_mov_b32 v{t2}, {G1-512-512}
    v_mov_b32 v{t0}, {G0-512}
    v_cndmask_b32 v{t2}, v{t2}, v{t0}, vcc
    v_add3_u32 v{t2}, v{t2}, v{V['l16']}, s{ldsb}
    v_mov_b32 v{V['F']}, 0
    v_mov_b32 v{V['F']+1}, 0
    v_mov_b32 v{V['F']+2}, 0
    v_mov_b32 v{V['F']+3}, 0
    ds_write_b128 v{t2}, v[{V['F']}:{V['F']+3}]
    """)

def conv_load(A, V, SG):
    ch, ldsb, t = SG["ch"], SG["ldsb"], SG["tmp"]
    sh, sk = SG["srd_h"], SG["srd_kr"]
    A(f"""
    s_lshl_b32 s{t}, s{ch}, 12
    s_lshl_b32 s{t+1}, s{ch}, 13
    buffer_load_dword v{V['hd']}, v{V['ho']}, s[{sh}:{sh+3}], s{t} offen
    """)
    order = [("g", 0), ("f", 0), ("g", 1), ("f", 1), ("f", 2), ("f", 3)]
    for kind, j in order:
        if kind == "g":
            A(f"s_add_u32 m0, s{ldsb}, {G0 if j == 0 else G1}")
            if j == 1: A(f"s_add_u32 s{t+1}, s{t+1}, 4096")
            else: A("s_nop 0")
            for i in range(4):
                A(f"buffer_load_dwordx4 v{V['l16']}, s[{sk}:{sk+3}], s{t+1} offen offset:{1024*i} lds")
        else:
            A(f"s_add_u32 m0, s{ldsb}, {FB[j]+64}")
            if j > 0: A(f"s_add_u32 s{t}, s{t}, 4")
            else: A("s_nop 0")
            for i in range(4):
                A(f"buffer_load_dwordx4 v{V['l16']}, s[{sh}:{sh+3}], s{t} offen offset:{1024*i} lds")

def conv_compute(A, V, SG):
    ACC, Fb, Gb = V["acc"], V["F"], V["G"]
    order = mfma_order()
    def reads(r):
        buf = r & 1
        lst = []
        lst.append(("F", 0))
        for c in range(8): lst.append(("G", c))
        for p in range(1, 8): lst.append(("F", p))
        out = []
        for kind, i in lst:
            if kind == "F":
                reg = Fb + buf*32 + 4*i
                out.append(f"ds_read_b128 v[{reg}:{reg+3}], v{V['fa']} offset:{512*i + 64*r}")
            else:
                reg = Gb + buf*32 + 4*i
                out.append(f"ds_read_b128 v[{reg}:{reg+3}], v{V['ga']} offset:{512*i - 64*r + 448}")
        return out
    for l in reads(0): A(l)
    for r in range(8):
        buf = r & 1
        nxt = reads(r + 1) if r < 7 else []
        if r == 7:
            ob = Fb + (1 - buf)*32
            nxt = [f"ds_read_b32 v{ob + 2*q + hh}, v{V['ka']} offset:{512*q + 64*hh}" for q in range(8) for hh in range(2)]
        first = (r == 0)
        seen = set()
        for k, (p, c) in enumerate(order):
            q = p + c
            fr = Fb + buf*32 + 4*p; gr = Gb + buf*32 + 4*c
            if r == 0:
                pass
            if k == 0:
                A("s_waitcnt lgkmcnt(0)")
            src = "0" if (first and q not in seen) else f"v[{ACC+4*q}:{ACC+4*q+3}]"
            seen.add(q)
            A(f"v_mfma_f32_16x16x32_bf16 v[{ACC+4*q}:{ACC+4*q+3}], v[{gr}:{gr+3}], v[{fr}:{fr+3}], {src}")
            if k % 2 == 0 and k // 2 < len(nxt):
                A(nxt[k // 2])
    ob = Fb
    t0, t1 = V["t0"], V["t1"]
    sz, t = SG["srd_z"], SG["tmp"]
    A(f"""
    s_lshl_b32 s{t}, s{SG['ch']}, 12
    s_waitcnt lgkmcnt(0)
    s_nop 7
    """)
    for q in range(8):
        for hh in range(2):
            kvr = ob + 2*q + hh
            a0 = ACC + 4*q + 2*hh
            A(f"""
            v_and_b32 v{t0}, 0xffff0000, v{kvr}
            v_lshlrev_b32 v{t1}, 16, v{kvr}
            v_fmac_f32 v{a0}, s{SG['D']}, v{t0}
            v_fmac_f32 v{a0+1}, s{SG['D']}, v{t1}
            v_cvt_pk_bf16_f32 v{kvr}, v{a0}, v{a0+1}
            buffer_store_dword v{kvr}, v{V['zo']}, s[{sz}:{sz+3}], s{t} offen offset:{512*q + 64*hh}
            """)

def gen_conv(NW=4):
    A = Asm()
    NWG = 640 // NW
    V = dict(lane=1, t0=2, t1=3, t2=4, fa=5, ga=6, ka=7, zo=8, l16=9, ho=10, hl=11, hd=12, acc=16, F=48, G=112)
    SG = dict(ldsb=3, ch=34, tmp=36, srd_h=16, srd_kr=20, srd_z=24, D=35)
    A(f"""
    s_cmp_ge_u32 s2, {NWG}
    s_cbranch_scc1 L_conv_end
    s_load_dwordx4 s[4:7], s[0:1], 32
    """)
    ts(A, 0)
    A(f"""
    s_load_dwordx2 s[12:13], s[0:1], 96    ; ws
    v_lshrrev_b32 v2, 6, v0
    v_and_b32 v1, 63, v0
    v_readfirstlane_b32 s33, v2            ; wave
    s_mul_i32 s34, s2, {NW}
    s_add_u32 s34, s34, s33                ; channel
    s_mul_i32 s3, s33, {CONV_WSZ}
    s_lshr_b32 s32, s34, 1
    s_lshl_b32 s32, s32, 2
    s_waitcnt lgkmcnt(0)
    s_load_dword s35, s[6:7], s32
    """)
    srd(A, 16, 4, SZ_SSM)
    srd(A, 20, 12, SZ_KR, KR_OFF)
    srd(A, 24, 12, SZ_ZT, ZT_OFF)
    conv_setup(A, V, SG)
    conv_load(A, V, SG)
    A(f"""
    s_waitcnt vmcnt(24)
    ds_write_b32 v{V['hl']}, v{V['hd']}
    s_waitcnt lgkmcnt(0)
    s_bitcmp1_b32 s34, 0
    s_cbranch_scc1 L_conv_odd
    s_lshl_b32 s35, s35, 16
    L_conv_odd:
    s_and_b32 s35, s35, 0xffff0000
    s_waitcnt vmcnt(0)
    """)
    ts(A, 1)
    tc(A, 6)
    conv_compute(A, V, SG)
    ts(A, 2)
    tc(A, 7)
    ts_store(A, 2, 3, 33, 12, 2)
    A("L_conv_end:")
    return kernel_wrap("conv_kernel", A.text(), vgpr=176), (NWG, 64*NW, CONV_WSZ*NW)

if __name__ == "__main__":
    chk(); print(mfma_order()); print(CONV_WSZ)
```

```python
S, D, F = 2048, 640, 1728
SZ_X = S*D*2
XN_OFF = 0
KR_OFF = SZ_X
SZ_KR = D*2*4096
ZT_OFF = KR_OFF + SZ_KR
SZ_ZT = D*4096
H_OFF = ZT_OFF + SZ_ZT
SZ_H = S*F*2
ST_OFF = H_OFF + SZ_H
SZ_ST = S*8
SZ_W1 = D*F*2
SZ_WD = F*D*2
SZ_SSM = D*S*2
FL_OFF = (ST_OFF + SZ_ST + 4095) // 4096 * 4096
SZ_FL = 16384
KVF_OFF = 0
HF_OFF = 4096
ZF_OFF = 8192
```

```python
import math, struct, sys
import asmlib
from asmlib import Asm, srd, kernel_wrap, b128_conflicts, b64_conflicts
from layout import *
from k_conv import FB, G0, G1, CONV_WSZ, mfma_order

def f32bits(x): return struct.unpack("<I", struct.pack("<f", x))[0]

SB = [0, 98304, 49152]
OFF_BG, OFF_BU = 32768, 40960
LDS_TOTAL = 163840
CS_OFF = 163328
LF_OFF = CS_OFF - 64
A_AREA = 98304
X_AREA = 0
XCH = [73728, 83968]
RINGSZ = 15360
ZT_L = 61440
LRING0 = 93504
OVF = [73728, 78848, 83968, 154944]
NST = 10
NS2 = 7
SPIN = 1 << 17

P_Q, P_K, P_V, P_SH, P_SSMK, P_SSMD, P_WG, P_WU, P_WD, P_OUT, P_DBG, P_WS = 48, 50, 52, 54, 56, 58, 62, 64, 66, 68, 70, 72
S0, S1, S2, S3, S4, S5, S6, S7 = 8, 12, 16, 20, 24, 28, 40, 44
sWV, sXCD, sSLOT, sNON = 3, 4, 5, 6
sMT, sNT, sMT2, sNT2 = 34, 35, 36, 37
def R(d): return f"s[{d}:{d+3}]"

DBG = False
import os
ROT = int(os.environ.get('ROT', '0'))
XP = os.environ.get('XP', '')
VTS = 127
def ts(A, i):
    if DBG:
        A(f"""
        s_memrealtime s[76:77]
        s_waitcnt lgkmcnt(0)
        v_writelane_b32 v{VTS}, s76, {i}
        """)
def tc(A, i):
    if DBG:
        A(f"""
        s_memtime s[76:77]
        s_waitcnt lgkmcnt(0)
        v_writelane_b32 v{VTS}, s76, {i}
        """)
def ts_store(A, vt):
    if not DBG: return
    A("s_waitcnt vmcnt(0)")
    ts(A, 15)
    A(f"""
    s_add_u32 s76, s{P_WS}, {32 << 20}
    s_addc_u32 s77, s{P_WS+1}, 0
    s_mov_b32 s78, 0x100000
    s_mov_b32 s79, 0x00020000
    s_lshl_b32 s75, s2, 3
    s_add_u32 s75, s75, s{sWV}
    s_lshl_b32 s75, s75, 8
    v_lshlrev_b32 v{vt}, 2, v1
    buffer_store_dword v{VTS}, v{vt}, s[76:79], s75 offen
    """)

def chk():
    for ks in range(2):
        ad = [ (l % 16)*128 + (((4*ks + l//16) ^ (((l % 16) >> 1) & 7))*16) for l in range(64)]
        assert b128_conflicts(ad) == 4
    for wn in range(2):
        for fb in range(2):
            for jj in range(2):
                ad = []
                for l in range(64):
                    i, kq = l % 16, l // 16
                    k = 8*kq + 4*jj + i//4
                    byte = (wn*64 + fb*32 + (i % 4)*8) ^ (((k >> 1) & 1) << 5) ^ (((k >> 3) & 1) << 6)
                    ad.append(k*128 + byte)
                assert b64_conflicts(ad) == 2
    for jj in range(2):
        ad = [ (16*jj + 4*(l//16) + (l % 16)//4)*160 + (l % 4)*8 for l in range(64)]
        assert b64_conflicts(ad) == 2
    print("banks ok")

def nonce_issue(A, v):
    A(f"buffer_load_dword v{v}, off, {R(S6)}, 0 sc1")
def nonce_ensure(A, v):
    L, D_ = A.label("L_non"), A.label("L_nond")
    A(f"""
    s_cmp_lg_u32 s{sNON}, 0
    s_cbranch_scc1 {D_}
    s_mov_b32 s74, {SPIN}
    {L}:
    buffer_load_dword v{v}, off, {R(S6)}, 0 sc1
    s_waitcnt vmcnt(0)
    v_readfirstlane_b32 s{sNON}, v{v}
    s_sub_u32 s74, s74, 1
    s_cmp_eq_u32 s74, 0
    s_cbranch_scc1 {D_}
    s_cmp_eq_u32 s{sNON}, 0
    s_cbranch_scc1 {L}
    {D_}:
    """)
def flag_store(A, v, soff):
    A(f"""
    v_mov_b32 v{v}, s{sNON}
    s_mov_b64 exec, 1
    buffer_store_dword v{v}, off, {R(S7)}, {soff} sc1
    s_mov_b64 exec, -1
    """)

def g2_srds(A):
    srd(A, S0, P_Q, SZ_X)
    srd(A, S1, P_WD, SZ_WD)
    srd(A, S2, P_OUT, SZ_X)
    srd(A, S3, P_WS, SZ_H, H_OFF)
    srd(A, S4, P_WS, SZ_ST, ST_OFF)
    srd(A, S5, P_WS, SZ_ZT, ZT_OFF)

L16, WV, WA2, ZA, XO, VFL, VZF, STR, T2 = 112, 113, 118, 119, 120, 121, 122, 124, 126
XR = 4
BW = 16
HB = [208, 224, 240, 96]
ACC2 = 128
sRB, sHO, sWO, sMK = 32, 33, 38, 98
sTOK, sZD = 39, 7

def g2_setup(A, t):
    A(f"""
    s_and_b32 s96, s{sWV}, 3               ; j
    s_mul_i32 s{sRB}, s96, {RINGSZ}
    s_add_u32 s97, s96, 28
    s_cmp_ge_u32 s{sWV}, 4
    s_cselect_b32 s97, s96, s97            ; kb0
    s_cselect_b32 s100, {LRING0}, 0
    s_add_u32 s{sRB}, s{sRB}, s100
    s_mov_b32 s{sMK}, 0x1111111
    s_mov_b32 s{sMK+1}, 0
    s_lshl_b64 s[{sMK}:{sMK+1}], s[{sMK}:{sMK+1}], s97
    s_and_b32 s{sMK+1}, s{sMK+1}, 0x3fffff
    s_mul_i32 s{sHO}, s{sMT2}, {4*54*1024}
    s_lshl_b32 s100, s97, 10
    s_add_u32 s{sHO}, s{sHO}, s100
    s_mul_i32 s{sWO}, s97, 40960
    s_lshl_b32 s{sTOK}, s{sMT2}, 6
    s_lshl_b32 s100, s96, 4
    s_add_u32 s{sTOK}, s{sTOK}, s100
    s_mul_i32 s100, s{sNT2}, 160
    v_lshlrev_b32 v{L16}, 4, v1
    v_add_u32 v{t}, s{sTOK}, v2
    v_mul_u32_u24 v{XO}, 1280, v{t}
    v_lshl_add_u32 v{XO}, v3, 3, v{XO}
    v_add_u32 v{XO}, s100, v{XO}
    ; tr addrs: row = 4g + i/4 ; byte (i%4)*8
    v_lshrrev_b32 v{t}, 2, v2
    v_lshl_add_u32 v{t}, v3, 2, v{t}
    v_and_b32 v{t+1}, 3, v2
    v_lshlrev_b32 v{t+1}, 3, v{t+1}
    v_mul_u32_u24 v{WA2}, 160, v{t}
    v_add3_u32 v{WA2}, v{WA2}, v{t+1}, s{sRB}
    s_mul_i32 s101, s96, 3072
    s_add_u32 s101, s101, {ZT_L}
    v_lshl_add_u32 v{ZA}, v{t}, 5, v{t+1}
    v_add_u32 v{ZA}, s101, v{ZA}
    """)
    for i in range(5):
        A(f"""
        v_add_u32 v{t}, {64*i}, v1
        v_mul_u32_u24 v{t+1}, 205, v{t}
        v_lshrrev_b32 v{t+1}, 11, v{t+1}       ; row
        v_mul_u32_u24 v{t+2}, 10, v{t+1}
        v_sub_u32 v{t+2}, v{t}, v{t+2}         ; chunk
        v_mul_u32_u24 v{t+3}, 1280, v{t+1}
        v_lshl_add_u32 v{t+3}, v{t+2}, 4, v{t+3}
        v_add_u32 v{t+3}, s100, v{t+3}
        v_subrev_u32 v{WV+i}, {1024*(i % 4)}, v{t+3}
        """)

def issueW(slot):
    L = [f"s_add_u32 m0, s{sRB}, {slot*5120}"]
    for i in range(4):
        L.append(f"buffer_load_dwordx4 v{WV+i}, {R(S1)}, s{sWO} offen offset:{1024*i} lds")
    L.append(f"s_add_u32 m0, s{sRB}, {slot*5120 + 4096}")
    L.append(f"buffer_load_dwordx4 v{WV+4}, {R(S1)}, s{sWO} offen lds")
    L.append(f"s_add_u32 s{sWO}, s{sWO}, {4*40960}")
    return L
def wreads(slot, b):
    wf = BW + 20*b
    return [f"ds_read_b64_tr_b16 v[{wf+4*nb+2*jj}:{wf+4*nb+2*jj+1}], v{WA2} offset:{slot*5120 + jj*2560 + nb*32}"
            for nb in range(5) for jj in range(2)]

def g1_compute(A):
    XA, WA, VN = 4, 8, 12
    FR, ACC = 16, 128
    A(f"""
    s_or_b32 s100, s2, s{sWV}
    s_cmp_lg_u32 s100, 0
    s_cbranch_scc1 L_g1c_np
    s_memrealtime s[100:101]
    s_waitcnt lgkmcnt(0)
    s_max_u32 s100, s100, 1
    v_mov_b32 v4, s100
    s_mov_b64 exec, 1
    buffer_store_dword v4, off, {R(S6)}, 0 sc1
    s_mov_b64 exec, -1
    L_g1c_np:
    """)
    g2_srds(A)
    A(f"""
    s_lshr_b32 s80, s{sWV}, 1              ; wm
    s_and_b32 s81, s{sWV}, 1               ; wn
    v_lshrrev_b32 v13, 1, v2               ; sw
    v_xor_b32 v13, v13, v3
    v_lshlrev_b32 v14, 7, v2
    s_lshl_b32 s100, s80, 14
    v_add_u32 v14, s100, v14
    v_lshl_add_u32 v{XA}, v13, 4, v14
    v_xor_b32 v13, 4, v13
    v_lshl_add_u32 v{XA+1}, v13, 4, v14
    v_add_u32 v{XA+2}, {SB[1]}, v{XA}
    v_add_u32 v{XA+3}, {SB[1]}, v{XA+1}
    v_lshrrev_b32 v13, 2, v2
    v_lshl_add_u32 v13, v3, 3, v13         ; k = 8kq + i/4
    v_and_b32 v14, 3, v2
    v_lshlrev_b32 v14, 3, v14
    s_lshl_b32 s100, s81, 6
    v_add_u32 v14, s100, v14
    v_bfe_u32 v15, v2, 3, 1
    v_lshlrev_b32 v15, 5, v15
    v_xor_b32 v14, v14, v15
    v_and_b32 v15, 1, v3
    v_lshlrev_b32 v15, 6, v15
    v_xor_b32 v14, v14, v15
    v_lshl_add_u32 v{WA}, v13, 7, v14
    v_add_u32 v{WA}, {OFF_BG}, v{WA}
    v_xor_b32 v{WA+1}, 32, v{WA}
    v_add_u32 v{WA+2}, {SB[1]}, v{WA}
    v_add_u32 v{WA+3}, {SB[1]}, v{WA+1}
    """)
    g2_setup(A, 16)
    def reads(st, ks, fs):
        slot = st % 3
        F = FR + 48*fs
        hi = 2 if slot == 1 else 0
        so = SB[2] if slot == 2 else 0
        L = []
        for f4 in range(4):
            gu, fb = f4 // 2, f4 % 2
            for jj in range(2):
                L.append(f"ds_read_b64_tr_b16 v[{F+4*f4+2*jj}:{F+4*f4+2*jj+1}], v{WA+hi+fb} offset:{so + gu*8192 + ks*4096 + jj*512}")
        X = [f"ds_read_b128 v[{F+16+4*tb}:{F+19+4*tb}], v{XA+hi+ks} offset:{so + 2048*tb}" for tb in range(8)]
        return L[:2] + X[:1] + L[2:] + X[1:]
    ts(A, 1)
    A("s_barrier")
    ts(A, 2)
    tc(A, 13)
    for l in reads(0, 0, 0): A(l)
    CSR, STG = 16, 32
    step = 0
    for st in range(NST):
        for ks in range(2):
            fs = step & 1
            F = FR + 48*fs
            last = (st == NST-1 and ks == 1)
            A("s_waitcnt lgkmcnt(0)")
            if ks == 1: A("s_barrier")
            if last:
                tc(A, 14)
                ts(A, 6)
                nxt = []
                pre = f"""
                s_lshl_b32 s100, s81, 7
                v_lshlrev_b32 v13, 4, v3
                v_add_u32 v13, s100, v13
                v_add_u32 v13, {CS_OFF}, v13
                s_lshl_b32 s100, s{sMT}, 8
                s_lshl_b32 s101, s80, 7
                s_add_u32 s100, s100, s101
                s_lshl_b32 s74, s100, 3
                v_lshlrev_b32 v14, 3, v2
                """
                nxt += [x.strip() for x in pre.strip().split("\n")]
                for tb in range(8):
                    nxt.append(f"buffer_load_dwordx2 v[{STG+2*tb}:{STG+2*tb+1}], v14, {R(S4)}, s74 offen offset:{128*tb} sc1")
                for f4 in range(4):
                    nxt.append(f"ds_read_b128 v[{CSR+4*f4}:{CSR+4*f4+3}], v13 offset:{(f4//2)*256 + (f4 % 2)*64}")
                for sl in range(3): nxt += issueW(sl)
                per = 2
            else:
                nxt = reads(st, 1, 1-fs) if ks == 0 else reads(st+1, 0, 1-fs)
                if 'D' in XP: nxt = []
                if st == 5 and ks == 0: nxt = nxt + [f"buffer_load_dword v{VN}, off, {R(S6)}, 0 sc1"]
                per = None
            ri = 0
            for mi in range(32):
                tb, f4 = mi // 4, mi % 4
                ac = ACC + tb*16 + f4*4
                src = "0" if step == 0 else f"v[{ac}:{ac+3}]"
                if not ('B' in XP and 0 < step < 19): A(f"v_mfma_f32_16x16x32_bf16 v[{ac}:{ac+3}], v[{F+4*f4}:{F+4*f4+3}], v[{F+16+4*tb}:{F+19+4*tb}], {src}")
                if per:
                    for _ in range(per):
                        if ri < len(nxt): A(nxt[ri]); ri += 1
                elif (mi % 3 != 2) and ri < len(nxt):
                    A(nxt[ri]); ri += 1
            while ri < len(nxt): A(nxt[ri]); ri += 1
            step += 1
    ts(A, 3)
    c1 = -2.0*math.log2(math.e)*math.sqrt(2.0/math.pi)
    c2 = c1*0.044715
    A(f"""
    s_waitcnt vmcnt(15)
    v_readfirstlane_b32 s{sNON}, v{VN}
    """)
    nonce_ensure(A, VN)
    Lc, Lok = A.label("L_stc"), A.label("L_stok")
    A(f"s_mov_b32 s101, {SPIN}")
    A(f"{Lc}:")
    A(f"v_cmp_ne_u32 vcc, s{sNON}, v{STG+1}")
    for tb in range(1, 8):
        A(f"v_cmp_ne_u32_e64 s[76:77], s{sNON}, v{STG+2*tb+1}")
        A(f"s_or_b64 vcc, vcc, s[76:77]")
    A(f"""
    s_cmp_eq_u64 vcc, 0
    s_cbranch_scc1 {Lok}
    s_sub_u32 s101, s101, 1
    s_cmp_eq_u32 s101, 0
    s_cbranch_scc1 {Lok}
    """)
    for tb in range(8):
        A(f"buffer_load_dwordx2 v[{STG+2*tb}:{STG+2*tb+1}], v14, {R(S4)}, s74 offen offset:{128*tb} sc1")
    A(f"""
    s_waitcnt vmcnt(0)
    s_branch {Lc}
    {Lok}:
    s_lshr_b32 s74, s100, 4
    s_mul_i32 s74, s74, 54
    s_lshl_b32 s101, s{sNT}, 1
    s_add_u32 s101, s101, s81              ; kb
    s_add_u32 s74, s74, s101
    s_lshl_b32 s74, s74, 10
    s_lshr_b32 s100, s100, 7               ; mhalf
    s_lshl_b32 s100, s100, 8
    s_lshl_b32 s101, s101, 2
    s_add_u32 s100, s100, s101
    s_add_u32 s100, s100, {HF_OFF}
    s_mov_b32 s96, {hex(f32bits(c1))}
    s_mov_b32 s97, {hex(f32bits(c2))}
    s_waitcnt lgkmcnt(0)
    """)
    K0 = 48
    T = 64
    for tb in range(8):
        g = STG + 2*tb
        kk = K0 + 8*(tb & 1)
        NM, C1, C2, S2_ = kk, kk+2, kk+4, kk+6
        A(f"""
        v_and_b32 v{kk+1}, 0xffff0000, v{g}        ; s
        v_lshlrev_b32 v{NM}, 16, v{g}              ; m
        v_rcp_f32 v{kk+3}, v{kk+1}
        v_mul_f32 v{S2_}, v{kk+1}, v{kk+1}
        v_xor_b32 v{NM}, 0x80000000, v{NM}
        v_mul_f32 v{C1}, s96, v{kk+3}
        v_mul_f32 v{kk+5}, v{kk+3}, v{kk+3}
        v_mul_f32 v{C2}, s97, v{kk+3}
        v_mul_f32 v{C2}, v{C2}, v{kk+5}
        """)
        ag, au = ACC + tb*16, ACC + tb*16 + 8
        TT = T + 8*(tb & 1)
        bc = "op_sel_hi:[1,0,1]"
        P = range(4)
        for p in P: A(f"v_pk_fma_f32 v[{ag+2*p}:{ag+2*p+1}], v[{CSR+2*p}:{CSR+2*p+1}], v[{NM}:{NM+1}], v[{ag+2*p}:{ag+2*p+1}] {bc}")
        for p in P: A(f"v_pk_mul_f32 v[{TT+2*p}:{TT+2*p+1}], v[{ag+2*p}:{ag+2*p+1}], v[{ag+2*p}:{ag+2*p+1}]")
        for p in P: A(f"v_pk_fma_f32 v[{TT+2*p}:{TT+2*p+1}], v[{TT+2*p}:{TT+2*p+1}], v[{C2}:{C2+1}], v[{C1}:{C1+1}] op_sel_hi:[1,0,0]")
        for p in P: A(f"v_pk_mul_f32 v[{TT+2*p}:{TT+2*p+1}], v[{TT+2*p}:{TT+2*p+1}], v[{ag+2*p}:{ag+2*p+1}]")
        for p in P:
            A(f"v_exp_f32 v{TT+2*p}, v{TT+2*p}")
            A(f"v_exp_f32 v{TT+2*p+1}, v{TT+2*p+1}")
            A(f"v_pk_fma_f32 v[{au+2*p}:{au+2*p+1}], v[{CSR+8+2*p}:{CSR+8+2*p+1}], v[{NM}:{NM+1}], v[{au+2*p}:{au+2*p+1}] {bc}")
        for p in P: A(f"v_pk_fma_f32 v[{TT+2*p}:{TT+2*p+1}], v[{TT+2*p}:{TT+2*p+1}], v[{S2_}:{S2_+1}], v[{S2_}:{S2_+1}] op_sel_hi:[1,0,0]")
        for p in P:
            A(f"v_rcp_f32 v{TT+2*p}, v{TT+2*p}")
            A(f"v_rcp_f32 v{TT+2*p+1}, v{TT+2*p+1}")
            A(f"v_pk_mul_f32 v[{au+2*p}:{au+2*p+1}], v[{au+2*p}:{au+2*p+1}], v[{ag+2*p}:{ag+2*p+1}]")
        for p in P: A(f"v_pk_mul_f32 v[{TT+2*p}:{TT+2*p+1}], v[{TT+2*p}:{TT+2*p+1}], v[{au+2*p}:{au+2*p+1}]")
        O = 80 + 4*(tb % 4)
        for p in P: A(f"v_cvt_pk_bf16_f32 v{O+p}, v{TT+2*p}, v{TT+2*p+1}")
        A(f"buffer_store_dwordx4 v[{O}:{O+3}], v{L16}, {R(S3)}, s74 offen sc1")
        if tb < 7: A(f"s_add_u32 s74, s74, {54*1024}")
    ts(A, 4)
    A("s_waitcnt vmcnt(0)")
    flag_store(A, 13, "s100")
    ts(A, 5)
    A("s_branch L_g2_p2")

CV = dict(t0=4, t1=5, t2=6, fa=7, ga=8, ka=9, hl=10, hd=11, lf=12, xa=13,
          fa0=226, ga0=227, ka0=228, hl0=229, zo=230, ho=231, zp0=232, l16=L16, acc=16, F=48, G=128)
sCH, sLB, sD, sHP, sPR, sTASK, sNTASK, sGL = 32, 33, 38, 39, 7, 96, 97, 98

def conv_setup(A):
    V = CV
    t0, t1, t2 = V["t0"], V["t1"], V["t2"]
    A(f"""
    s_and_b32 s{sHP}, s{sWV}, 1
    s_bfe_u32 s{sPR}, s{sWV}, 0x10001
    s_lshl_b32 s100, s{sHP}, 8             ; 256*hp
    s_lshl_b32 s101, s{sHP}, 11            ; 2048*hp
    v_add_u32 v{t2}, 1, v2
    v_and_b32 v{V['fa0']}, 3, v{t2}        ; j
    v_lshrrev_b32 v{t2}, 2, v{t2}
    v_lshlrev_b32 v{t2}, 4, v{t2}
    v_cmp_ne_u32 vcc, 0, v{V['fa0']}
    v_mul_u32_u24 v{V['fa0']}, 4160, v{V['fa0']}
    v_add_u32 v{V['fa0']}, v{V['fa0']}, v{t2}
    v_cndmask_b32 v{t2}, 0, 16, vcc
    v_add_u32 v{V['fa0']}, v{V['fa0']}, v{t2}
    v_lshlrev_b32 v{t2}, 4, v3
    v_sub_u32 v{V['fa0']}, v{V['fa0']}, v{t2}
    v_add_u32 v{V['fa0']}, 48, v{V['fa0']}
    v_add_u32 v{V['fa0']}, s100, v{V['fa0']}
    v_and_b32 v{V['ga0']}, 1, v2
    v_cmp_eq_u32 vcc, 1, v{V['ga0']}
    v_lshrrev_b32 v{V['ga0']}, 1, v2
    v_lshlrev_b32 v{V['ga0']}, 6, v{V['ga0']}
    v_add_u32 v{V['ga0']}, v{V['ga0']}, v{t2}
    v_mov_b32 v{t2}, {G1-448}
    v_mov_b32 v{t0}, {G0-448}
    v_cndmask_b32 v{t2}, v{t2}, v{t0}, vcc
    v_add_u32 v{V['ga0']}, v{V['ga0']}, v{t2}
    v_subrev_u32 v{V['ga0']}, s100, v{V['ga0']}
    v_lshlrev_b32 v{t2}, 7, v3
    v_lshl_add_u32 v{V['zo']}, v2, 2, v{t2}
    v_add_u32 v{V['zo']}, s101, v{V['zo']}
    v_and_b32 v{t2}, 3, v2
    v_lshlrev_b32 v{t2}, 3, v{t2}
    v_sub_u32 v{V['ka0']}, v{V['zo']}, v{t2}
    v_add_u32 v{V['ka0']}, {G0+12}, v{V['ka0']}
    v_lshlrev_b32 v{V['l16']}, 4, v1
    v_add_u32 v{t2}, v2, v3
    v_subrev_u32 v{t2}, 16, v{t2}
    v_lshlrev_b32 v{V['ho']}, 2, v{t2}
    v_cmp_gt_i32 vcc, 0, v{t2}
    v_mov_b32 v{t2}, 0x7fff0000
    v_cndmask_b32 v{V['ho']}, v{V['ho']}, v{t2}, vcc
    v_cmp_ne_u32 vcc, 0, v3
    v_mul_u32_u24 v{V['hl0']}, 4160, v3
    v_cndmask_b32 v{t2}, 0, 16, vcc
    v_add_u32 v{V['hl0']}, v{V['hl0']}, v{t2}
    v_lshl_add_u32 v{V['hl0']}, v2, 2, v{V['hl0']}
    v_cmp_gt_u32 vcc, 32, v1
    v_mov_b32 v{t2}, {G1-512-512}
    v_mov_b32 v{t0}, {G0-512}
    v_cndmask_b32 v{t2}, v{t2}, v{t0}, vcc
    v_add_u32 v{V['zp0']}, v{t2}, v{V['l16']}
    s_mul_i32 s100, s{sPR}, {XCH[1]-XCH[0]}
    s_add_u32 s100, s100, {XCH[0]}
    v_add_u32 v{V['xa']}, s100, v{V['l16']}
    s_lshl_b32 s100, s{sPR}, 3
    s_add_u32 s100, s100, {LF_OFF}
    v_mov_b32 v{V['lf']}, s100
    """)

def conv_srds(A):
    srd(A, S3, P_SSMK, SZ_SSM)
    srd(A, S4, P_WS, SZ_KR, KR_OFF)
    srd(A, S5, P_WS, SZ_ZT, ZT_OFF)

def load_F(A, ch, lb, hd):
    V = CV
    A(f"""
    s_lshl_b32 s100, s{ch}, 12
    buffer_load_dword v{hd}, v{V['ho']}, {R(S3)}, s100 offen
    """)
    for j in range(4):
        A(f"s_add_u32 m0, s{lb}, {FB[j]+64}")
        if j > 0: A("s_add_u32 s100, s100, 4")
        for i in range(4):
            A(f"buffer_load_dwordx4 v{V['l16']}, {R(S3)}, s100 offen offset:{1024*i} lds")
def load_G(A, ch, lb):
    V = CV
    A(f"s_lshl_b32 s100, s{ch}, 13")
    for j in range(2):
        A(f"s_add_u32 m0, s{lb}, {G0 if j == 0 else G1}")
        if j == 1: A("s_add_u32 s100, s100, 4096")
        for i in range(4):
            A(f"buffer_load_dwordx4 v{V['l16']}, {R(S4)}, s100 offen offset:{1024*i} sc1 lds")
def zero_pads(A, lb, z4, t):
    A(f"""
    v_add_u32 v{t}, s{lb}, v{CV['zp0']}
    v_mov_b32 v{z4}, 0
    v_mov_b32 v{z4+1}, 0
    v_mov_b32 v{z4+2}, 0
    v_mov_b32 v{z4+3}, 0
    ds_write_b128 v{t}, v[{z4}:{z4+3}]
    """)
def kv_poll(A, v, soff):
    L, D_ = A.label("L_kvp"), A.label("L_kvd")
    A(f"""
    s_mov_b32 s74, {SPIN}
    {L}:
    buffer_load_dword v{v}, off, {R(S7)}, {soff} sc1
    s_waitcnt vmcnt(0)
    v_readfirstlane_b32 s101, v{v}
    s_cmp_eq_u32 s101, s{sNON}
    s_cbranch_scc1 {D_}
    s_sub_u32 s74, s74, 1
    s_cmp_lg_u32 s74, 0
    s_cbranch_scc1 {L}
    {D_}:
    """)

def pair_signal(A, k):
    V = CV
    A(f"""
    s_mul_i32 s100, s{sTASK}, 3
    s_add_u32 s100, s100, {k}
    s_lshl_b32 s101, s{sHP}, 2
    v_mov_b32 v{V['t0']}, s100
    v_add_u32 v{V['t1']}, s101, v{V['lf']}
    ds_write_b32 v{V['t1']}, v{V['t0']}
    """)
def pair_wait(A):
    V = CV
    L, D_ = A.label("L_pw"), A.label("L_pwd")
    A(f"""
    s_xor_b32 s101, s101, 4
    v_add_u32 v{V['t1']}, s101, v{V['lf']}
    s_mov_b32 s74, {SPIN*8}
    {L}:
    ds_read_b32 v{V['t0']}, v{V['t1']}
    s_waitcnt lgkmcnt(0)
    v_readfirstlane_b32 s101, v{V['t0']}
    s_cmp_ge_u32 s101, s100
    s_cbranch_scc1 {D_}
    s_sub_u32 s74, s74, 1
    s_cmp_lg_u32 s74, 0
    s_cbranch_scc1 {L}
    {D_}:
    """)

def conv_task(A):
    V = CV
    ACC, Fb, Gb = V["acc"], V["F"], V["G"]
    A("L_conv:")
    A(f"""
    s_lshr_b32 s100, s{sCH}, 1
    s_lshl_b32 s100, s100, 2
    s_load_dword s{sD}, s[{P_SSMD}:{P_SSMD+1}], s100
    v_add_u32 v{V['fa']}, s{sLB}, v{V['fa0']}
    v_add_u32 v{V['ga']}, s{sLB}, v{V['ga0']}
    v_add_u32 v{V['ka']}, s{sLB}, v{V['ka0']}
    v_add_u32 v{V['hl']}, s{sLB}, v{V['hl0']}
    s_cmp_eq_u32 s{sTASK}, 1
    s_cbranch_scc1 L_conv_nh
    s_waitcnt vmcnt(0)
    s_bitcmp0_b32 s{sGL}, 1
    s_cbranch_scc1 L_conv_nh
    ds_write_b32 v{V['hl']}, v{V['hd']}
    L_conv_nh:
    s_waitcnt lgkmcnt(0)
    s_bitcmp1_b32 s{sCH}, 0
    s_cbranch_scc1 L_conv_odd
    s_lshl_b32 s{sD}, s{sD}, 16
    L_conv_odd:
    s_and_b32 s{sD}, s{sD}, 0xffff0000
    """)
    pair_signal(A, 1)
    pair_wait(A)
    ts(A, 6)
    order = mfma_order()
    def reads(r):
        buf = r & 1
        lst = [("F", 0)] + [("G", c) for c in range(8)] + [("F", p) for p in range(1, 8)]
        out = []
        for kind, i in lst:
            if kind == "F":
                reg = Fb + buf*32 + 4*i
                out.append(f"ds_read_b128 v[{reg}:{reg+3}], v{V['fa']} offset:{512*i + 64*r}")
            else:
                reg = Gb + buf*32 + 4*i
                out.append(f"ds_read_b128 v[{reg}:{reg+3}], v{V['ga']} offset:{512*i - 64*r + 448}")
        return out
    for l in reads(0): A(l)
    NR = 4
    ob = Fb
    for r in range(NR):
        buf = r & 1
        nxt = reads(r + 1) if r < NR-1 else [f"ds_read_b32 v{ob + 2*q + hh}, v{V['ka']} offset:{512*q + 64*hh}" for q in range(4) for hh in range(2)]
        seen = set()
        for k, (p, c) in enumerate(order):
            q = p + c
            fr = Fb + buf*32 + 4*p; gr = Gb + buf*32 + 4*c
            if k == 0: A("s_waitcnt lgkmcnt(0)")
            src = "0" if (r == 0 and q not in seen) else f"v[{ACC+4*q}:{ACC+4*q+3}]"
            seen.add(q)
            A(f"v_mfma_f32_16x16x32_bf16 v[{ACC+4*q}:{ACC+4*q+3}], v[{gr}:{gr+3}], v[{fr}:{fr+3}], {src}")
            if k % 2 == 0 and k // 2 < len(nxt): A(nxt[k // 2])
    A(f"""
    s_cmp_eq_u32 s{sHP}, 0
    s_cbranch_scc1 L_conv_x0
    """)
    for q in range(4): A(f"ds_write_b128 v{V['xa']}, v[{ACC+4*q}:{ACC+4*q+3}] offset:{4096 + 1024*q}")
    for i in range(16): A(f"v_mov_b32 v{ACC+i}, v{ACC+16+i}")
    A(f"s_branch L_conv_x1")
    A("L_conv_x0:")
    for q in range(4): A(f"ds_write_b128 v{V['xa']}, v[{ACC+16+4*q}:{ACC+16+4*q+3}] offset:{1024*q}")
    A("L_conv_x1:")
    A("s_waitcnt lgkmcnt(0)")
    pair_signal(A, 2)
    pair_wait(A)
    A(f"""
    s_xor_b32 s100, s{sHP}, 1
    s_lshl_b32 s100, s100, 12
    v_add_u32 v{V['t2']}, s100, v{V['xa']}
    """)
    for q in range(4): A(f"ds_read_b128 v[{ACC+16+4*q}:{ACC+16+4*q+3}], v{V['t2']} offset:{1024*q}")
    A("s_waitcnt lgkmcnt(0)")
    pair_signal(A, 3)
    t0, t1 = V["t2"], V["hd"]
    A(f"s_lshl_b32 s74, s{sCH}, 12")
    for q in range(4):
        for hh in range(2):
            kvr = ob + 2*q + hh
            a0 = ACC + 4*q + 2*hh
            A(f"""
            v_and_b32 v{t0}, 0xffff0000, v{kvr}
            v_lshlrev_b32 v{t1}, 16, v{kvr}
            v_add_f32 v{a0}, v{a0}, v{a0+16}
            v_add_f32 v{a0+1}, v{a0+1}, v{a0+17}
            v_fmac_f32 v{a0}, s{sD}, v{t0}
            v_fmac_f32 v{a0+1}, s{sD}, v{t1}
            v_cvt_pk_bf16_f32 v{kvr}, v{a0}, v{a0+1}
            buffer_store_dword v{kvr}, v{V['zo']}, {R(S5)}, s74 offen offset:{512*q + 64*hh} sc1
            """)
    pair_wait(A)
    ts(A, 7)
    A(f"""
    s_mul_i32 s100, s{sHP}, 2560
    s_lshl_b32 s101, s{sCH}, 2
    s_add_u32 s100, s100, s101
    s_add_u32 s100, s100, {ZF_OFF}
    s_waitcnt vmcnt(0)
    """)
    flag_store(A, V['t0'], "s100")
    A(f"""
    s_add_u32 s{sTASK}, s{sTASK}, 1
    s_cmp_ge_u32 s{sTASK}, s{sNTASK}
    s_cbranch_scc1 L_g2_lentry
    s_cmp_eq_u32 s{sTASK}, 2
    s_cbranch_scc1 L_conv_t2
    """)
    A(f"""
    s_sub_u32 s99, s{sCH}, 1
    s_cmp_eq_u32 s{sHP}, 0
    s_cbranch_scc1 L_conv_pg
    """)
    load_F(A, 99, sLB, 14)
    A("s_branch L_conv_pd")
    A("L_conv_pg:")
    load_G(A, 99, sLB)
    A(f"""
    L_conv_pd:
    s_add_u32 s{sCH}, s{sCH}, 1
    s_sub_u32 s{sLB}, s{sLB}, {A_AREA - X_AREA}
    s_mov_b32 s{sGL}, 0
    s_branch L_conv
    L_conv_t2:
    s_sub_u32 s{sCH}, s{sCH}, 2
    s_add_u32 s{sLB}, s{sLB}, {A_AREA - X_AREA}
    s_lshl_b32 s{sGL}, s{sHP}, 1
    v_mov_b32 v{V['hd']}, v14
    s_branch L_conv
    """)

def g1_loader(A):
    VA, VB, CA, CS, TMP, VN = 192, 200, 202, 206, 210, 15
    srd(A, S0, P_Q, SZ_X)
    srd(A, S1, P_WG, SZ_W1)
    srd(A, S2, P_WU, SZ_W1)
    A(f"""
    s_sub_u32 s96, s{sWV}, 4               ; lw
    v_lshrrev_b32 v4, 3, v1                ; l/8
    v_and_b32 v5, 7, v1                    ; l%8
    s_lshl_b32 s100, s{sMT}, 8
    s_lshl_b32 s101, s96, 6
    s_add_u32 s100, s100, s101
    v_add_u32 v6, s100, v4
    v_mul_u32_u24 v6, 1280, v6
    v_xor_b32 v7, v5, v3
    v_xor_b32 v8, 4, v7
    v_lshl_add_u32 v7, v7, 4, v6
    v_lshl_add_u32 v8, v8, 4, v6
    """)
    for i in range(8):
        A(f"v_add_u32 v{VA+i}, {10240*i - 1024*(i % 4)}, v{7 + (i & 1)}")
    A(f"""
    s_lshl_b32 s101, s96, 4
    v_add_u32 v6, s101, v4                 ; k row
    v_mul_u32_u24 v6, 3456, v6
    v_and_b32 v7, 1, v3
    v_lshlrev_b32 v7, 1, v7
    v_xor_b32 v7, v7, v5
    v_xor_b32 v8, 4, v7
    s_lshl_b32 s101, s{sNT}, 7
    v_add_u32 v6, s101, v6
    v_lshl_add_u32 v{VB}, v7, 4, v6
    v_lshl_add_u32 v{VB+1}, v8, 4, v6
    v_add_u32 v{VB+1}, {8*3456 - 1024}, v{VB+1}
    s_lshl_b32 s32, s96, 13                ; lw*8192
    s_lshl_b32 s33, s96, 11                ; lw*2048
    """)
    if ROT == 0: A("s_mov_b32 s82, 0")
    elif ROT == 1: A(f"s_and_b32 s82, s{sNT}, 1")
    elif ROT == 2:
        A(f"""
        s_mul_i32 s82, s{sNT}, 26
        s_lshr_b32 s82, s82, 8
        s_mul_i32 s82, s82, 10
        s_sub_u32 s82, s{sNT}, s82
        """)
    elif ROT == 3: A(f"s_and_b32 s82, s{sMT}, 1")
    elif ROT == 4:
        A(f"s_and_b32 s82, s{sNT}, 1")
        A(f"s_mul_i32 s82, s82, 5")
    A(f"s_mul_i32 s83, s82, {64*3456}")
    A(f"s_lshl_b32 s82, s82, 7")
    def issue(st):
        sb = SB[st % 3]
        A(f"s_mov_b32 s100, s82")
        A(f"s_mov_b32 s101, s83")
        A(f"s_add_u32 s82, s82, 128")
        A(f"s_add_u32 s83, s83, {64*3456}")
        A(f"s_cmp_eq_u32 s82, 1280")
        A(f"s_cselect_b32 s82, 0, s82")
        A(f"s_cselect_b32 s83, 0, s83")
        A(f"s_add_u32 m0, s33, {sb + OFF_BG}")
        for i in range(2): A(f"buffer_load_dwordx4 v{VB+i}, {R(S1)}, s101 offen offset:{1024*i} lds")
        A(f"s_add_u32 m0, s33, {sb + OFF_BU}")
        for i in range(2): A(f"buffer_load_dwordx4 v{VB+i}, {R(S2)}, s101 offen offset:{1024*i} lds")
        for hh in range(2):
            A(f"s_add_u32 m0, s32, {sb + hh*4096}")
            for i in range(4): A(f"buffer_load_dwordx4 v{VA+4*hh+i}, {R(S0)}, s100 offen offset:{1024*i} lds")
    issue(0); issue(1); issue(2)
    A(f"""
    s_cmp_lg_u32 s{sWV}, 4
    s_cbranch_scc1 L_g1l_np
    v_mov_b32 v4, {LF_OFF}
    v_mov_b32 v8, 0
    v_mov_b32 v9, 0
    v_mov_b32 v10, 0
    v_mov_b32 v11, 0
    ds_write_b128 v4, v[8:11]
    L_g1l_np:
    """)
    A(f"""
    v_lshrrev_b32 v4, 2, v2
    v_lshl_add_u32 v4, v3, 3, v4           ; k
    v_and_b32 v5, 3, v2
    v_lshlrev_b32 v5, 3, v5
    s_lshr_b32 s100, s96, 1
    s_lshl_b32 s100, s100, 6
    v_add_u32 v5, s100, v5
    v_bfe_u32 v6, v2, 3, 1
    v_lshlrev_b32 v6, 5, v6
    v_xor_b32 v5, v5, v6
    v_and_b32 v6, 1, v3
    v_lshlrev_b32 v6, 6, v6
    v_xor_b32 v5, v5, v6
    v_lshl_add_u32 v{CA}, v4, 7, v5
    s_and_b32 s100, s96, 1
    s_lshl_b32 s100, s100, 13
    s_add_u32 s100, s100, {OFF_BG}
    v_add_u32 v{CA}, s100, v{CA}
    v_xor_b32 v{CA+1}, 32, v{CA}
    v_add_u32 v{CA+2}, {SB[1]}, v{CA}
    v_add_u32 v{CA+3}, {SB[1]}, v{CA+1}
    s_mov_b32 s99, 0x3f803f80
    """)
    for i in range(4): A(f"v_mov_b32 v{CS+i}, 0")
    conv_setup(A)
    conv_srds(A)
    def colsum(st):
        if 'A' in XP: return
        slot = st % 3
        hi = 2 if slot == 1 else 0
        so = SB[2] if slot == 2 else 0
        n = 0
        for fb in range(2):
            for ks in range(2):
                for jj in range(2):
                    A(f"ds_read_b64_tr_b16 v[{TMP+2*n}:{TMP+2*n+1}], v{CA+hi+fb} offset:{so + ks*4096 + jj*512}")
                    n += 1
        for n in range(8):
            fb = n // 4
            if n % 2 == 0: A(f"s_waitcnt lgkmcnt({6-n})")
            A(f"v_dot2c_f32_bf16 v{CS+2*fb}, s99, v{TMP+2*n}")
            A(f"v_dot2c_f32_bf16 v{CS+2*fb+1}, s99, v{TMP+2*n+1}")
    A(f"""
    s_mul_i32 s100, s{sSLOT}, 52
    s_lshr_b32 s100, s100, 8               ; slot/5
    s_mul_i32 s101, s100, 11
    s_add_u32 s101, s101, s{sSLOT}         ; 16*(slot/5) + slot%5
    s_mul_i32 s38, s{sXCD}, 80
    s_add_u32 s101, s101, s38
    s_lshl_b32 s38, s{sPR}, 3
    s_add_u32 s97, s101, s38
    s_mul_i32 s38, s{sXCD}, 5
    s_add_u32 s38, s38, s100
    s_lshl_b32 s38, s38, 6
    s_add_u32 s38, s38, {KVF_OFF}
    s_mul_i32 s96, s{sPR}, {CONV_WSZ}
    s_add_u32 s96, s96, {A_AREA}           ; area (s96)
    s_mov_b32 s{sGL}, 0
    s_waitcnt vmcnt(24)
    """)
    ts(A, 1)
    A("s_barrier")
    for st in range(NST):
        if st == 8:
            A(f"""
            s_cmp_ge_u32 s{sSLOT}, 25
            s_cbranch_scc1 L_g1l_c8n
            s_cmp_eq_u32 s{sHP}, 0
            s_cbranch_scc1 L_g1l_c8g
            """)
            load_F(A, 97, 96, CV['hd'])
            A(f"s_mov_b32 s{sGL}, 2")
            colsum(8)
            A("s_waitcnt vmcnt(17)")
            A("s_branch L_g1l_c8d")
            A("L_g1l_c8g:")
            A(f"""
            v_readfirstlane_b32 s100, v20
            s_cmp_eq_u32 s{sNON}, 0
            s_cbranch_scc1 L_g1l_c8z
            s_cmp_lg_u32 s100, s{sNON}
            s_cbranch_scc1 L_g1l_c8z
            """)
            load_G(A, 97, 96)
            A(f"s_mov_b32 s{sGL}, 1")
            zero_pads(A, 96, 24, 21)
            colsum(8)
            A("s_waitcnt vmcnt(8)")
            A("s_branch L_g1l_c8d")
            A("L_g1l_c8z:")
            zero_pads(A, 96, 24, 21)
            A("L_g1l_c8n:")
            colsum(8)
            A("s_waitcnt vmcnt(0)")
            A("L_g1l_c8d:")
            A("s_barrier")
            continue
        colsum(st)
        if st < NST-1:
            A(f"s_waitcnt vmcnt(12)")
            if st == 6: A(f"v_readfirstlane_b32 s{sNON}, v{VN}")
            A("s_barrier")
            if st == 4: nonce_issue(A, VN)
            if st == 5: A(f"buffer_load_dword v20, off, {R(S7)}, s38 sc1")
            if st + 3 < NST and 'C' not in XP: issue(st + 3)
    A(f"v_add_f32 v{CS}, v{CS}, v{CS+1}")
    A(f"v_add_f32 v{CS+1}, v{CS+2}, v{CS+3}")
    for sw in ("v_permlane16_swap_b32", "v_permlane32_swap_b32"):
        for i in range(2): A(f"v_mov_b32 v{TMP+i}, v{CS+i}")
        for i in range(2): A(f"{sw} v{CS+i}, v{TMP+i}")
        for i in range(2): A(f"v_add_f32 v{CS+i}, v{CS+i}, v{TMP+i}")
    A(f"""
    s_sub_u32 s100, s{sWV}, 4
    s_lshr_b32 s101, s100, 1
    s_lshl_b32 s101, s101, 7
    s_and_b32 s100, s100, 1
    s_lshl_b32 s100, s100, 8
    s_add_u32 s100, s100, s101
    s_add_u32 s100, s100, {CS_OFF}
    v_lshlrev_b32 v{TMP}, 2, v2
    v_add_u32 v{TMP}, s100, v{TMP}
    ds_write_b32 v{TMP}, v{CS}
    ds_write_b32 v{TMP}, v{CS+1} offset:64
    s_waitcnt lgkmcnt(0)
    s_barrier
    """)
    ts(A, 3)
    nonce_ensure(A, VN)
    A(f"""
    s_cmp_ge_u32 s{sSLOT}, 25
    s_cbranch_scc1 L_g2_lentry
    s_cmp_lg_u32 s{sGL}, 0
    s_cbranch_scc1 L_g1l_gd
    """)
    kv_poll(A, TMP, "s38")
    load_G(A, 97, 96)
    A(f"""
    L_g1l_gd:
    s_mov_b32 s{sCH}, s97
    s_mov_b32 s{sLB}, s96
    s_mov_b32 s{sTASK}, 0
    s_mov_b32 s{sNTASK}, 1
    s_branch L_conv
    """)

def prep(A):
    KR, VR, SK = 16, 64, 236
    KF, VF, TP, KV, OUT = 128, 152, 156, 164, 184
    B0 = 13
    srd(A, S0, P_K, SZ_X)
    srd(A, S1, P_V, SZ_X)
    srd(A, S2, P_SH, 640*8)
    A(f"""
    s_mul_i32 s96, s{sXCD}, 5
    s_add_u32 s96, s96, s{sSLOT}
    s_sub_u32 s96, s96, 27                 ; p
    s_lshl_b32 s100, s{sWV}, 8
    s_sub_u32 s100, s100, 4
    s_mul_i32 s100, s100, 1280
    s_lshl_b32 s101, s96, 5
    s_add_u32 s100, s100, s101             ; (wave*256-4)*1280 + c0*2
    v_lshrrev_b32 v4, 1, v1                ; i
    v_and_b32 v5, 1, v1                    ; half
    v_mul_u32_u24 v{B0}, 10240, v4
    v_lshl_add_u32 v{B0}, v5, 4, v{B0}
    v_add_u32 v{B0}, s100, v{B0}
    v_add_u32 v{B0+1}, 5120, v{B0}
    v_add_u32 v{B0+2}, 10240, v{B0}
    """)
    for r in range(12):
        A(f"buffer_load_dwordx4 v[{KR+4*r}:{KR+4*r+3}], v{B0+r//4}, {R(S0)}, 0 offen offset:{(r % 4)*1280}")
    for i in range(9):
        r = i + 3
        A(f"buffer_load_dwordx4 v[{VR+4*i}:{VR+4*i+3}], v{B0+r//4}, {R(S1)}, 0 offen offset:{(r % 4)*1280}")
    A(f"""
    s_lshl_b32 s100, s96, 7
    v_lshlrev_b32 v6, 6, v5
    """)
    for i in range(4):
        A(f"buffer_load_dwordx4 v[{SK+4*i}:{SK+4*i+3}], v6, {R(S2)}, s100 offen offset:{16*i}")
    conv_srds(A)
    GA, LA, LX = 116, 117, 118
    A(f"""
    s_lshl_b32 s100, s{sWV}, 9
    v_lshlrev_b32 v6, 4, v4
    v_add_u32 v6, s100, v6                 ; g*16
    v_lshl_add_u32 v{GA}, v5, 16, v6
    v_mul_u32_u24 v7, {CONV_WSZ}, v5
    v_add_u32 v{LX}, v6, v7
    v_add_u32 v{LA}, {A_AREA}, v{LX}
    """)
    conv_setup(A)
    A(f"""
    s_cmp_lt_u32 s{sWV}, 4
    s_cbranch_scc1 L_pr_nf
    s_lshl_b32 s97, s96, 4
    s_lshl_b32 s100, s{sPR}, 3
    s_add_u32 s97, s97, s100
    s_add_u32 s97, s97, 6
    s_add_u32 s99, s97, s{sHP}
    s_mul_i32 s33, s{sPR}, {CONV_WSZ}
    s_add_u32 s33, s33, {A_AREA}
    s_mul_i32 s100, s{sHP}, {A_AREA - X_AREA}
    s_sub_u32 s98, s33, s100
    """)
    load_F(A, 99, 98, CV['hd'])
    zero_pads(A, 98, 120, 119)
    A(f"""
    v_add_u32 v{CV['hl']}, s98, v{CV['hl0']}
    s_cmp_lg_u32 s{sWV}, 4
    s_cbranch_scc1 L_pr_nf
    v_mov_b32 v119, {LF_OFF}
    ds_write_b128 v119, v[120:123]
    L_pr_nf:
    s_lshl_b32 s38, s96, 17                ; c0*8192
    """)
    nonce_issue(A, 124)
    A("s_cmp_lt_u32 s3, 4")
    A("s_cbranch_scc1 L_pr_w0")
    A("s_waitcnt vmcnt(18)")
    A("s_branch L_pr_w1")
    A("L_pr_w0:")
    A("s_waitcnt vmcnt(1)")
    A("L_pr_w1:")
    ts(A, 1)
    for cp in range(4):
        for j in range(4):
            for e in range(2):
                src = SK + 2*(2*cp + e) + j//2
                if j % 2 == 0: A(f"v_lshlrev_b32 v{TP+2*j+e}, 16, v{src}")
                else: A(f"v_and_b32 v{TP+2*j+e}, 0xffff0000, v{src}")
        for r in range(12):
            A(f"v_lshlrev_b32 v{KF+2*r}, 16, v{KR+4*r+cp}")
            A(f"v_and_b32 v{KF+2*r+1}, 0xffff0000, v{KR+4*r+cp}")
        pr = lambda b, i: f"v[{b+2*i}:{b+2*i+1}]"
        for i in range(9): A(f"v_pk_mul_f32 {pr(KV,i)}, {pr(KF,i)}, {pr(TP,3)}")
        for j in (2, 1, 0):
            for i in range(9): A(f"v_pk_fma_f32 {pr(KV,i)}, {pr(KF,i+3-j)}, {pr(TP,j)}, {pr(KV,i)}")
        for i in range(9):
            vf = VF + 2*(i & 1)
            A(f"v_lshlrev_b32 v{vf}, 16, v{VR+4*i+cp}")
            A(f"v_and_b32 v{vf+1}, 0xffff0000, v{VR+4*i+cp}")
            A(f"v_pk_mul_f32 {pr(KV,i)}, {pr(KV,i)}, v[{vf}:{vf+1}]")
        for e in range(2):
            cl = 2*cp + e
            o = OUT + 16*(cp & 1) + 8*e
            for j in range(4):
                A(f"v_cvt_pk_bf16_f32 v{o+j}, v{KV+2*(8-2*j)+e}, v{KV+2*(7-2*j)+e}")
                A(f"v_cvt_pk_bf16_f32 v{o+4+j}, v{KV+2*(7-2*j)+e}, v{KV+2*(6-2*j)+e}")
            if cl < 6:
                A(f"buffer_store_dwordx4 v[{o}:{o+3}], v{GA}, {R(S4)}, s38 offen sc1")
                A(f"s_add_u32 s38, s38, 4096")
                A(f"buffer_store_dwordx4 v[{o+4}:{o+7}], v{GA}, {R(S4)}, s38 offen sc1")
                A(f"s_add_u32 s38, s38, 4096")
            else:
                la = LA if cl == 6 else LX
                A(f"ds_write_b128 v{la}, v[{o}:{o+3}] offset:{G0}")
                A(f"ds_write_b128 v{la}, v[{o+4}:{o+7}] offset:{G1}")
    ts(A, 2)
    A(f"""
    s_waitcnt vmcnt(0)
    v_readfirstlane_b32 s{sNON}, v124
    s_cmp_lt_u32 s{sWV}, 4
    s_cbranch_scc1 L_pr_c
    ds_write_b32 v{CV['hl']}, v{CV['hd']}
    s_waitcnt lgkmcnt(0)
    s_barrier
    """)
    nonce_ensure(A, 124)
    A(f"""
    s_mov_b32 s{sCH}, s97
    s_mov_b32 s{sTASK}, 0
    s_mov_b32 s{sNTASK}, 3
    s_mov_b32 s{sGL}, 0
    s_branch L_conv
    L_pr_c:
    s_waitcnt lgkmcnt(0)
    s_barrier
    """)
    ts(A, 3)
    nonce_ensure(A, 124)
    A(f"""
    s_cmp_lg_u32 s{sWV}, 0
    s_cbranch_scc1 L_pr_nk
    s_lshl_b32 s100, s96, 6
    s_add_u32 s100, s100, {KVF_OFF}
    """)
    flag_store(A, 4, "s100")
    A("L_pr_nk:")
    g2_srds(A)
    A(f"""
    s_cmp_ge_u32 s96, 32
    s_cbranch_scc1 L_pr_ns
    s_lshl_b32 s100, s96, 6
    s_lshl_b32 s101, s{sWV}, 4
    s_add_u32 s100, s100, s101
    v_add_u32 v4, s100, v3                 ; row (t=0)
    v_lshlrev_b32 v5, 3, v4
    v_mul_u32_u24 v4, 1280, v4
    v_lshl_add_u32 v4, v2, 4, v4
    s_mov_b32 s99, 0x3f803f80
    """)
    for t in range(4):
        A(f"s_mov_b32 s100, {t*5120}")
        for i in range(5):
            A(f"buffer_load_dwordx4 v[{16+20*t+4*i}:{19+20*t+4*i}], v4, {R(S0)}, s100 offen offset:{256*i}")
    SU = 100
    for i in range(16): A(f"v_mov_b32 v{SU+i}, 0")
    for t in range(4):
        A(f"s_waitcnt vmcnt({15-5*t})")
        for i in range(20):
            x = 16 + 20*t + i
            A(f"v_dot2c_f32_bf16 v{SU+4*t+(i & 1)}, s99, v{x}")
            A(f"v_dot2c_f32_bf16 v{SU+4*t+2+(i & 1)}, v{x}, v{x}")
    for t in range(4):
        A(f"v_add_f32 v{SU+4*t}, v{SU+4*t}, v{SU+4*t+1}")
        A(f"v_add_f32 v{SU+4*t+1}, v{SU+4*t+2}, v{SU+4*t+3}")
    for sh in (8, 4, 2, 1):
        for t in range(4):
            for e in range(2):
                x = SU + 4*t + e
                A(f"v_add_f32_dpp v{x}, v{x}, v{x} row_ror:{sh} row_mask:0xf bank_mask:0xf")
    for t in range(4):
        m, q = SU + 4*t, SU + 4*t + 1
        A(f"""
        v_mul_f32 v{m}, {1.0/640!r}, v{m}
        v_mul_f32 v{q}, {1.0/640!r}, v{q}
        v_fma_f32 v{q}, -v{m}, v{m}, v{q}
        v_max_f32 v{q}, 0, v{q}
        v_cvt_pk_bf16_f32 v{q}, v{q}, v{q}
        v_lshlrev_b32 v{q}, 16, v{q}
        v_add_f32 v{q}, 0x3727c5ac, v{q}
        v_cvt_pk_bf16_f32 v{q}, v{q}, v{q}
        v_lshlrev_b32 v{q}, 16, v{q}
        v_sqrt_f32 v{q}, v{q}
        s_nop 0
        v_cvt_pk_bf16_f32 v{m}, v{m}, v{q}
        v_mov_b32 v{q}, s{sNON}
        """)
    A("s_mov_b32 exec_lo, 0x00010001")
    A("s_mov_b32 exec_hi, 0x00010001")
    for t in range(4):
        A(f"buffer_store_dwordx2 v[{SU+4*t}:{SU+4*t+1}], v5, {R(S4)}, 0 offen offset:{32*t} sc1")
    A("s_mov_b64 exec, -1")
    A("L_pr_ns:")
    g2_setup(A, 16)
    L, D_ = A.label("L_xw"), A.label("L_xwd")
    A(f"""
    v_mov_b32 v16, {LF_OFF}
    s_mov_b32 s74, {SPIN*8}
    {L}:
    ds_read_b128 v[20:23], v16
    s_waitcnt lgkmcnt(0)
    v_min_u32 v20, v20, v21
    v_min3_u32 v20, v20, v22, v23
    v_readfirstlane_b32 s100, v20
    s_cmp_ge_u32 s100, 6
    s_cbranch_scc1 {D_}
    s_sleep 4
    s_sub_u32 s74, s74, 1
    s_cmp_lg_u32 s74, 0
    s_cbranch_scc1 {L}
    {D_}:
    """)
    ts(A, 4)
    for sl in range(3):
        for l in issueW(sl): A(l)
    A("s_branch L_g2_p2")

def gemm2(A):
    A("L_g2_lentry:")
    g2_srds(A)
    g2_setup(A, 16)
    for sl in range(3):
        for l in issueW(sl): A(l)
    A("L_g2_p2:")
    A("s_waitcnt vmcnt(0)")
    for b in range(3):
        for l in wreads(b, b): A(l)
    A("s_waitcnt lgkmcnt(0)")
    for sl in range(3):
        for l in issueW(sl): A(l)
    A(f"""
    v_add_u32 v{T2}, s{sTOK}, v2
    v_lshlrev_b32 v{T2+0}, 3, v{T2}
    buffer_load_dwordx2 v[{STR}:{STR+1}], v{T2}, {R(S4)}, 0 offen sc1
    """)
    for nb in range(5):
        A(f"buffer_load_dwordx2 v[{XR+2*nb}:{XR+2*nb+1}], v{XO}, {R(S0)}, 0 offen offset:{32*nb}")
    A("s_waitcnt vmcnt(16)")
    for l in wreads(0, 3): A(l)
    A(f"""
    s_lshr_b32 s100, s{sMT2}, 1
    s_lshl_b32 s100, s100, 8
    s_add_u32 s100, s100, {HF_OFF}
    v_lshlrev_b32 v14, 2, v1
    s_mov_b32 s{sZD}, 0
    s_waitcnt lgkmcnt(0)
    """)
    for l in issueW(0): A(l)
    ts(A, 8)
    L, D_ = A.label("L_hp"), A.label("L_hpd")
    A(f"""
    s_mov_b32 s74, {SPIN}
    {L}:
    buffer_load_dword v{VFL}, v14, {R(S7)}, s100 offen sc1
    s_waitcnt vmcnt(0)
    v_cmp_ne_u32 vcc, s{sNON}, v{VFL}
    s_and_b64 vcc, vcc, s[{sMK}:{sMK+1}]
    s_cbranch_scc0 {D_}
    s_sub_u32 s74, s74, 1
    s_cmp_lg_u32 s74, 0
    s_cbranch_scc1 {L}
    {D_}:
    """)
    ts(A, 9)
    A(f"""
    s_cmp_lt_u32 s{sWV}, 4
    s_cbranch_scc1 L_g2_np
    s_setprio 1
    L_g2_np:
    """)
    q = []
    def hload(i, tb):
        L_ = []
        if i == NS2-1 and tb == 0:
            L_ += [f"s_cmp_eq_u32 s{sWV}, 2", f"s_cselect_b32 s{sHO}, 0x40000000, s{sHO}",
                   f"s_cmp_eq_u32 s{sWV}, 3", f"s_cselect_b32 s{sHO}, 0x40000000, s{sHO}"]
        hb = HB[i % 4] + 4*tb
        L_.append(f"s_add_u32 s101, s{sHO}, {tb*54*1024}")
        L_.append(f"buffer_load_dwordx4 v[{hb}:{hb+3}], v{L16}, {R(S3)}, s101 offen sc1")
        if tb == 3: L_.append(f"s_add_u32 s{sHO}, s{sHO}, 4096")
        q.append((i, tb))
        return L_
    for i in range(4):
        for tb in range(4):
            for l in hload(i, tb): A(l)
    A(f"""
    s_lshr_b32 s96, s{sMT2}, 4
    s_mul_i32 s96, s96, 2560
    s_mul_i32 s97, s{sNT2}, 320
    s_add_u32 s96, s96, s97
    s_add_u32 s96, s96, {ZF_OFF}
    v_lshlrev_b32 v15, 3, v1
    s_cmp_ge_u32 s{sWV}, 4
    s_cbranch_scc1 L_g2_nzf
    buffer_load_dwordx2 v[{VZF}:{VZF+1}], v15, {R(S7)}, s96 offen sc1
    L_g2_nzf:
    """)
    def zload():
        A(f"""
        v_lshrrev_b32 v{T2}, 1, v1
        v_lshlrev_b32 v{T2}, 12, v{T2}
        v_and_b32 v14, 1, v1
        v_lshl_add_u32 v{T2}, v14, 4, v{T2}
        s_mul_i32 s100, s{sNT2}, {80*4096}
        s_lshl_b32 s101, s{sTOK}, 1
        s_add_u32 s100, s100, s101
        s_mul_i32 s101, s{sWV}, 3072
        s_add_u32 m0, s101, {ZT_L}
        """)
        for i in range(3):
            A(f"buffer_load_dwordx4 v{T2}, {R(S5)}, s100 offen sc1 lds")
            if i < 2:
                A(f"s_add_u32 m0, m0, 1024")
                A(f"s_add_u32 s100, s100, {32*4096}")
    def zcheck():
        A(f"""
        v_cmp_ne_u32 vcc, s{sNON}, v{VZF}
        v_cmp_ne_u32_e64 s[100:101], s{sNON}, v{VZF+1}
        s_or_b64 vcc, vcc, s[100:101]
        s_and_b32 vcc_hi, vcc_hi, 0xff
        s_cmp_eq_u64 vcc, 0
        """)
    for i in range(NS2):
        wf = BW + 20*(i % 4)
        fill = wreads((i+3) % 3 + 0 if False else [1, 2, 0][i-1], (i-1) % 4) if 1 <= i <= 3 else []
        fi = 0
        A("s_waitcnt lgkmcnt(0)")
        for tb in range(4):
            n = len(q) - 1 - q.index((i, tb))
            A(f"s_waitcnt vmcnt({n})")
            if i == 4 and tb == 1:
                A(f"""
                s_cmp_ge_u32 s{sWV}, 4
                s_cbranch_scc1 L_g2_nz
                """)
                zcheck()
                A("s_cbranch_scc0 L_g2_nz")
                zload()
                A(f"s_mov_b32 s{sZD}, 1")
                A("L_g2_nz:")
            hb = HB[i % 4] + 4*tb
            for nb in range(5):
                ac = ACC2 + (tb*5 + nb)*4
                src = "0" if i == 0 else f"v[{ac}:{ac+3}]"
                A(f"v_mfma_f32_16x16x32_bf16 v[{ac}:{ac+3}], v[{wf+4*nb}:{wf+4*nb+3}], v[{hb}:{hb+3}], {src}")
                if nb % 2 == 0 and fi < len(fill): A(fill[fi]); fi += 1
            if i + 4 < NS2:
                for l in hload(i + 4, tb): A(l)
        assert fi == len(fill)
    ts(A, 10)
    A(f"""
    v_add_u32 v14, s{sRB}, v{L16}
    s_cmp_lt_u32 s{sWV}, 4
    s_cbranch_scc1 L_g2_c
    s_sub_u32 s100, s{sWV}, 4
    s_mul_i32 s101, s100, 5120
    s_add_u32 s101, s101, {OVF[0]}
    s_cmp_eq_u32 s100, 3
    s_cselect_b32 s101, {OVF[3]}, s101
    v_add_u32 v15, s101, v{L16}
    """)
    for b in range(20):
        ac = ACC2 + 4*b
        if b < 15: A(f"ds_write_b128 v14, v[{ac}:{ac+3}] offset:{1024*b}")
        else: A(f"ds_write_b128 v15, v[{ac}:{ac+3}] offset:{1024*(b-15)}")
    A("s_waitcnt lgkmcnt(0)")
    A("s_barrier")
    ts_store(A, 14)
    A("s_branch L_end")
    A("L_g2_c:")
    OWN = 208
    for w in range(4):
        A(f"s_cmp_lg_u32 s{sWV}, {w}")
        A(f"s_cbranch_scc1 L_g2_red_{w}")
        for tb in range(4):
            if tb == w: continue
            sl = (tb - w - 1) & 3
            for nb in range(5):
                ac = ACC2 + (tb*5 + nb)*4
                A(f"ds_write_b128 v14, v[{ac}:{ac+3}] offset:{(sl*5 + nb)*1024}")
        for nb in range(5):
            ac = ACC2 + (w*5 + nb)*4
            for r in range(4): A(f"v_mov_b32 v{OWN+4*nb+r}, v{ac+r}")
        A(f"L_g2_red_{w}:")
    L, D_ = A.label("L_zp"), A.label("L_zpd")
    A(f"""
    s_cmp_lg_u32 s{sZD}, 0
    s_cbranch_scc1 L_g2_zd
    s_mov_b32 s74, {SPIN}
    {L}:
    buffer_load_dwordx2 v[{VZF}:{VZF+1}], v15, {R(S7)}, s96 offen sc1
    s_waitcnt vmcnt(0)
    """)
    zcheck()
    A(f"""
    s_cbranch_scc1 {D_}
    s_sub_u32 s74, s74, 1
    s_cmp_lg_u32 s74, 0
    s_cbranch_scc1 {L}
    {D_}:
    """)
    zload()
    A("L_g2_zd:")
    L, D_ = A.label("L_sp"), A.label("L_spd")
    A(f"""
    v_add_u32 v{T2}, s{sTOK}, v2
    v_lshlrev_b32 v{T2}, 3, v{T2}
    s_mov_b32 s74, {SPIN}
    {L}:
    v_cmp_ne_u32 vcc, s{sNON}, v{STR+1}
    s_cmp_eq_u64 vcc, 0
    s_cbranch_scc1 {D_}
    buffer_load_dwordx2 v[{STR}:{STR+1}], v{T2}, {R(S4)}, 0 offen sc1
    s_waitcnt vmcnt(0)
    s_sub_u32 s74, s74, 1
    s_cmp_lg_u32 s74, 0
    s_cbranch_scc1 {L}
    {D_}:
    v_and_b32 v{STR+1}, 0xffff0000, v{STR}
    v_lshlrev_b32 v{STR}, 16, v{STR}
    v_rcp_f32 v{STR+1}, v{STR+1}
    s_waitcnt vmcnt(0) lgkmcnt(0)
    s_barrier
    """)
    ts(A, 11)
    P = [ACC2 + 20*k for k in range(4)] + [BW + 20*k for k in range(3)]
    for sl in range(3):
        A(f"""
        s_sub_u32 s100, s{sWV}, {1+sl}
        s_and_b32 s100, s100, 3
        s_mul_i32 s100, s100, {RINGSZ}
        v_add_u32 v14, s100, v{L16}
        """)
        for nb in range(5):
            A(f"ds_read_b128 v[{P[sl]+4*nb}:{P[sl]+4*nb+3}], v14 offset:{(sl*5+nb)*1024}")
    A(f"""
    s_mul_i32 s100, s{sWV}, 5120
    s_add_u32 s100, s100, {LRING0}
    s_mov_b32 s97, {RINGSZ}
    s_cmp_eq_u32 s{sWV}, 3
    s_cselect_b32 s101, {OVF[0]}, s100
    s_cselect_b32 s97, 5120, s97
    """)
    for lw in range(4):
        if lw == 3:
            A(f"s_cmp_eq_u32 s{sWV}, 3")
            A(f"s_cselect_b32 s101, {OVF[3]}, s101")
        A(f"v_add_u32 v{14 + (lw & 1)}, s101, v{L16}")
        for nb in range(5):
            A(f"ds_read_b128 v[{P[3+lw]+4*nb}:{P[3+lw]+4*nb+3}], v{14 + (lw & 1)} offset:{nb*1024}")
        if lw < 3: A("s_add_u32 s101, s101, s97")
    ZR = 228
    for nb in range(5):
        A(f"ds_read_b64_tr_b16 v[{ZR+2*nb}:{ZR+2*nb+1}], v{ZA} offset:{512*nb}")
    for k in range(7):
        rem = (6-k)*5 + 5
        A(f"s_waitcnt lgkmcnt({min(rem, 15)})")
        for nb in range(5):
            for p in range(2):
                a = OWN + 4*nb + 2*p; b = P[k] + 4*nb + 2*p
                A(f"v_pk_add_f32 v[{a}:{a+1}], v[{a}:{a+1}], v[{b}:{b+1}]")
    A("s_waitcnt lgkmcnt(0)")
    T = 240
    for nb in range(5):
        for p in range(2):
            xr, zr = XR + 2*nb + p, ZR + 2*nb + p
            a = OWN + 4*nb + 2*p
            A(f"""
            v_lshlrev_b32 v{T}, 16, v{xr}
            v_and_b32 v{T+1}, 0xffff0000, v{xr}
            v_lshlrev_b32 v{T+2}, 16, v{zr}
            v_and_b32 v{T+3}, 0xffff0000, v{zr}
            v_add_f32 v{a}, v{a}, v{T}
            v_add_f32 v{a+1}, v{a+1}, v{T+1}
            v_sub_f32 v{T}, v{T}, v{STR}
            v_sub_f32 v{T+1}, v{T+1}, v{STR}
            v_mul_f32 v{T+2}, v{T+2}, v{STR+1}
            v_mul_f32 v{T+3}, v{T+3}, v{STR+1}
            v_fmac_f32 v{a}, v{T}, v{T+2}
            v_fmac_f32 v{a+1}, v{T+1}, v{T+3}
            v_cvt_pk_bf16_f32 v{xr}, v{a}, v{a+1}
            """)
        A(f"buffer_store_dwordx2 v[{XR+2*nb}:{XR+2*nb+1}], v{XO}, {R(S2)}, 0 offen offset:{32*nb}")
    ts(A, 12)
    ts_store(A, 14)

def gen(name="fused_kernel"):
    A = Asm()
    A(f"""
    s_cmp_ge_u32 s2, 256
    s_cbranch_scc1 L_end
    s_load_dwordx16 s[48:63], s[0:1], 0
    s_load_dwordx8 s[64:71], s[0:1], 64
    s_load_dwordx2 s[72:73], s[0:1], 96
    v_lshrrev_b32 v2, 6, v0
    v_and_b32 v1, 63, v0
    v_readfirstlane_b32 s{sWV}, v2
    s_and_b32 s{sXCD}, s2, 7
    s_lshr_b32 s{sSLOT}, s2, 3
    s_lshr_b32 s96, s{sXCD}, 1             ; b
    s_mul_i32 s97, s96, 27
    s_add_u32 s97, s97, s{sSLOT}           ; idx
    s_lshr_b32 s{sNT}, s97, 2
    s_and_b32 s97, s97, 3
    s_and_b32 s98, s{sXCD}, 1
    s_lshl_b32 s98, s98, 2
    s_add_u32 s{sMT}, s97, s98
    s_lshl_b32 s{sMT2}, s{sMT}, 2
    s_add_u32 s{sMT2}, s{sMT2}, s96
    s_lshr_b32 s{sNT2}, s{sSLOT}, 2
    s_mov_b32 s{sNON}, 0
    v_and_b32 v2, 15, v1
    v_lshrrev_b32 v3, 4, v1
    """)
    if DBG: A(f"v_mov_b32 v{VTS}, 0")
    ts(A, 0)
    A("s_waitcnt lgkmcnt(0)")
    srd(A, S6, P_DBG, 256)
    srd(A, S7, P_WS, SZ_FL, FL_OFF)
    A(f"""
    s_cmp_ge_u32 s{sSLOT}, 27
    s_cbranch_scc1 L_prep
    s_cmp_lt_u32 s{sWV}, 4
    s_cbranch_scc1 L_g1c
    """)
    g1_loader(A)
    A("L_g1c:")
    g1_compute(A)
    A("L_prep:")
    prep(A)
    conv_task(A)
    gemm2(A)
    A("L_end:")
    return kernel_wrap(name, A.text(), vgpr=256)

if __name__ == "__main__":
    chk()
    from build import HEAD, NAME
    out = sys.argv[1]
    DBG = len(sys.argv) > 2 and sys.argv[2] == "dbg"
    txt = HEAD + f"; @launch kernel=fused_kernel grid=(256,1,1) block=(512,1,1) lds={LDS_TOTAL}\n"
    txt += '.amdgcn_target "amdgcn-amd-amdhsa--gfx950"\n' + gen()
    open(out, "w").write(txt)
```

```python
import math, struct, sys, os
import asmlib
from asmlib import Asm, srd, kernel_wrap, b128_conflicts, b64_conflicts
from layout import *
from k_conv import FB, CONV_WSZ, mfma_order
G0 = 16656
G1 = G0 + 4640
assert G1 + 4096 + 512 <= CONV_WSZ

def f32bits(x): return struct.unpack("<I", struct.pack("<f", x))[0]

SB = [0, 98304, 49152]
OFF_BG, OFF_BU = 32768, 40960
LDS_TOTAL = 163840
CS_OFF = 163328
LF_OFF = CS_OFF - 64
ST_L = LF_OFF - 1024
A_AREA = 98304
WS_ = [51200, 0, 98304]
ZT_L = 40960
OVF0 = 139264
NTD = 6
KRG = 64*4096 + 128
NCV = 25
NST = 10
NS2 = 7
SPIN = 1 << 13
assert 6*CONV_WSZ <= ST_L and OVF0 + 4*5120 <= ST_L

P_Q, P_K, P_V, P_SH, P_SSMK, P_SSMD, P_WG, P_WU, P_WD, P_OUT, P_DBG, P_WS = 48, 50, 52, 54, 56, 58, 62, 64, 66, 68, 70, 72
S0, S1, S2, S3, S4, S5, S6, S7 = 8, 12, 16, 20, 24, 28, 40, 44
sWV, sXCD, sSLOT, sNON = 3, 4, 5, 6
sMT, sNT, sMT2, sNT2 = 34, 35, 36, 37
sWM, sWN = 80, 81
sRB, sHO, sWO, sTOK, sMK, sZD, sRBC, sWOC = 84, 85, 86, 87, 88, 90, 91, 92
sCH, sLB, sD, sHP, sPR, sTASK, sNTASK, sGL = 32, 33, 38, 39, 7, 96, 97, 98
sKVF = 82
sZP, sCW = 93, 94
def R(d): return f"s[{d}:{d+3}]"

DBG = False
XP = os.environ.get('XP', '')
VTS = 127
SC = ' sc1' if 'S' in XP else ''
def ts(A, i, op="s_memrealtime"):
    if DBG:
        A(f"""
        {op} s[76:77]
        s_waitcnt lgkmcnt(0)
        v_writelane_b32 v{VTS}, s76, {i}
        """)
def tc(A, i): ts(A, i, "s_memtime")
def ts_store(A, vt):
    if not DBG: return
    A("s_waitcnt vmcnt(0)")
    ts(A, 15)
    A(f"""
    s_add_u32 s76, s{P_WS}, {32 << 20}
    s_addc_u32 s77, s{P_WS+1}, 0
    s_mov_b32 s78, 0x100000
    s_mov_b32 s79, 0x00020000
    s_lshl_b32 s75, s2, 3
    s_add_u32 s75, s75, s{sWV}
    s_lshl_b32 s75, s75, 8
    v_lshlrev_b32 v{vt}, 2, v1
    buffer_store_dword v{VTS}, v{vt}, s[76:79], s75 offen
    """)

def nonce_issue(A, v):
    A(f"buffer_load_dword v{v}, off, {R(S6)}, 0 sc1")
def nonce_ensure(A, v):
    L, D_ = A.label("L_non"), A.label("L_nond")
    A(f"""
    s_cmp_lg_u32 s{sNON}, 0
    s_cbranch_scc1 {D_}
    s_mov_b32 s74, {SPIN}
    {L}:
    buffer_load_dword v{v}, off, {R(S6)}, 0 sc1
    s_waitcnt vmcnt(0)
    v_readfirstlane_b32 s{sNON}, v{v}
    s_sub_u32 s74, s74, 1
    s_cmp_eq_u32 s74, 0
    s_cbranch_scc1 {D_}
    s_cmp_eq_u32 s{sNON}, 0
    s_cbranch_scc1 {L}
    {D_}:
    """)
def flag_store(A, v, soff):
    A(f"""
    v_mov_b32 v{v}, s{sNON}
    s_mov_b64 exec, 1
    buffer_store_dword v{v}, off, {R(S7)}, {soff} sc1
    s_mov_b64 exec, -1
    """)
def lds_wait_min(A, nw, first, val, t, sleep=True):
    L, D_ = A.label("L_xw"), A.label("L_xwd")
    A(f"""
    v_mov_b32 v{t+8}, {LF_OFF + 4*first}
    s_mov_b32 s74, {SPIN*8}
    {L}:
    ds_read_b128 v[{t}:{t+3}], v{t+8}
    """)
    if nw == 8: A(f"ds_read_b128 v[{t+4}:{t+7}], v{t+8} offset:16")
    A(f"""
    s_waitcnt lgkmcnt(0)
    v_min_u32 v{t}, v{t}, v{t+1}
    v_min3_u32 v{t}, v{t}, v{t+2}, v{t+3}
    """)
    if nw == 8:
        A(f"v_min3_u32 v{t}, v{t}, v{t+4}, v{t+5}")
        A(f"v_min3_u32 v{t}, v{t}, v{t+6}, v{t+7}")
    A(f"""
    v_readfirstlane_b32 s100, v{t}
    s_cmp_ge_u32 s100, {val}
    s_cbranch_scc1 {D_}
    {"s_sleep 2" if sleep else ""}
    s_sub_u32 s74, s74, 1
    s_cmp_lg_u32 s74, 0
    s_cbranch_scc1 {L}
    {D_}:
    """)

def g2_srds(A):
    srd(A, S0, P_Q, SZ_X)
    srd(A, S1, P_WD, SZ_WD)
    srd(A, S2, P_OUT, SZ_X)
    srd(A, S3, P_WS, SZ_H, H_OFF)
    srd(A, S4, P_WS, SZ_ST, ST_OFF)
    srd(A, S5, P_WS, SZ_ZT, ZT_OFF)

L16, WV, WA2, ZA, XO, VFL, VZF, STR, T2 = 112, 113, 118, 119, 120, 121, 122, 124, 126
XR = 4
BW = 16
HB = [208, 224, 240, 96]
ACC2 = 128

def g2_setup(A, t):
    A(f"""
    s_and_b32 s99, s{sWV}, 3               ; j
    s_mul_i32 s{sRB}, s{sWV}, 5120
    s_mul_i32 s{sRBC}, s99, 5120
    s_add_u32 s74, s99, 28
    s_mul_i32 s{sWOC}, s74, 40960
    s_cmp_ge_u32 s{sWV}, 4
    s_cselect_b32 s74, s99, s74            ; kb0
    s_mov_b32 s{sMK}, 0x1111111
    s_mov_b32 s{sMK+1}, 0
    s_lshl_b64 s[{sMK}:{sMK+1}], s[{sMK}:{sMK+1}], s74
    s_and_b32 s{sMK+1}, s{sMK+1}, 0x3fffff
    s_mul_i32 s{sHO}, s{sMT2}, {4*54*1024}
    s_lshl_b32 s100, s74, 10
    s_add_u32 s{sHO}, s{sHO}, s100
    s_mul_i32 s{sWO}, s74, 40960
    s_lshl_b32 s{sTOK}, s{sMT2}, 6
    s_lshl_b32 s100, s99, 4
    s_add_u32 s{sTOK}, s{sTOK}, s100
    s_mul_i32 s100, s{sNT2}, 160
    v_lshlrev_b32 v{L16}, 4, v1
    v_add_u32 v{t}, s{sTOK}, v2
    v_mul_u32_u24 v{XO}, 1280, v{t}
    v_lshl_add_u32 v{XO}, v3, 3, v{XO}
    v_add_u32 v{XO}, s100, v{XO}
    v_lshrrev_b32 v{t}, 2, v2
    v_lshl_add_u32 v{t}, v3, 2, v{t}
    v_and_b32 v{t+1}, 3, v2
    v_lshlrev_b32 v{t+1}, 3, v{t+1}
    v_mul_u32_u24 v{WA2}, 160, v{t}
    v_add3_u32 v{WA2}, v{WA2}, v{t+1}, s{sRB}
    s_mul_i32 s101, s99, 2560
    s_add_u32 s101, s101, {ZT_L}
    v_lshl_add_u32 v{ZA}, v{t}, 5, v{t+1}
    v_add_u32 v{ZA}, s101, v{ZA}
    """)
    for i in range(5):
        A(f"""
        v_add_u32 v{t}, {64*i}, v1
        v_mul_u32_u24 v{t+1}, 205, v{t}
        v_lshrrev_b32 v{t+1}, 11, v{t+1}
        v_mul_u32_u24 v{t+2}, 10, v{t+1}
        v_sub_u32 v{t+2}, v{t}, v{t+2}
        v_mul_u32_u24 v{t+3}, 1280, v{t+1}
        v_lshl_add_u32 v{t+3}, v{t+2}, 4, v{t+3}
        v_add_u32 v{t+3}, s100, v{t+3}
        v_subrev_u32 v{WV+i}, {1024*(i % 4)}, v{t+3}
        """)

def issueW(slot, rb=sRB, wo=sWO):
    L = [f"s_add_u32 m0, s{rb}, {WS_[slot]}"]
    for i in range(4):
        L.append(f"buffer_load_dwordx4 v{WV+i}, {R(S1)}, s{wo} offen offset:{1024*i} lds")
    L.append(f"s_add_u32 m0, s{rb}, {WS_[slot] + 4096}")
    L.append(f"buffer_load_dwordx4 v{WV+4}, {R(S1)}, s{wo} offen lds")
    L.append(f"s_add_u32 s{wo}, s{wo}, {4*40960}")
    return L
def wreads(slot, b):
    wf = BW + 20*b
    va, so = (VFL, 0) if slot == 2 else (WA2, WS_[slot])
    return [f"ds_read_b64_tr_b16 v[{wf+4*nb+2*jj}:{wf+4*nb+2*jj+1}], v{va} offset:{so + jj*2560 + nb*32}"
            for nb in range(5) for jj in range(2)]

def g1_compute(A):
    XA, WA, VN = 4, 8, 12
    FR, ACC = 16, 128
    srd(A, S0, P_Q, SZ_X)
    A(f"""
    s_lshl_b32 s100, s{sMT}, 8
    s_lshl_b32 s101, s{sNT}, 4
    s_add_u32 s100, s100, s101
    s_lshl_b32 s101, s{sWV}, 2
    s_add_u32 s100, s100, s101
    v_add_u32 v13, s100, v3                ; row
    v_lshlrev_b32 v14, 3, v13
    v_mul_u32_u24 v13, 1280, v13
    v_lshl_add_u32 v13, v2, 4, v13
    s_cmp_ge_u32 s{sNT}, 16
    s_cbranch_scc1 L_g1c_ns0
    """)
    for i in range(5):
        A(f"buffer_load_dwordx4 v[{16+4*i}:{19+4*i}], v13, {R(S0)}, 0 offen offset:{256*i}")
    A(f"""
    L_g1c_ns0:
    s_or_b32 s100, s2, s{sWV}
    s_cmp_lg_u32 s100, 0
    s_cbranch_scc1 L_g1c_np
    s_memrealtime s[100:101]
    s_waitcnt lgkmcnt(0)
    s_max_u32 s100, s100, 1
    v_mov_b32 v4, s100
    s_mov_b64 exec, 1
    buffer_store_dword v4, off, {R(S6)}, 0 sc1
    s_mov_b64 exec, -1
    L_g1c_np:
    """)
    g2_srds(A)
    A(f"""
    s_lshr_b32 s{sWM}, s{sWV}, 1
    s_and_b32 s{sWN}, s{sWV}, 1
    v_lshrrev_b32 v40, 1, v2               ; sw
    v_xor_b32 v40, v40, v3
    v_lshlrev_b32 v41, 7, v2
    s_lshl_b32 s100, s{sWM}, 14
    v_add_u32 v41, s100, v41
    v_lshl_add_u32 v{XA}, v40, 4, v41
    v_xor_b32 v40, 4, v40
    v_lshl_add_u32 v{XA+1}, v40, 4, v41
    v_add_u32 v{XA+2}, {SB[1]}, v{XA}
    v_add_u32 v{XA+3}, {SB[1]}, v{XA+1}
    v_lshrrev_b32 v40, 2, v2
    v_lshl_add_u32 v40, v3, 3, v40         ; k = 8kq + i/4
    v_and_b32 v41, 3, v2
    v_lshlrev_b32 v41, 3, v41
    s_lshl_b32 s100, s{sWN}, 6
    v_add_u32 v41, s100, v41
    v_bfe_u32 v42, v2, 3, 1
    v_lshlrev_b32 v42, 5, v42
    v_xor_b32 v41, v41, v42
    v_and_b32 v42, 1, v3
    v_lshlrev_b32 v42, 6, v42
    v_xor_b32 v41, v41, v42
    v_lshl_add_u32 v{WA}, v40, 7, v41
    v_add_u32 v{WA}, {OFF_BG}, v{WA}
    v_xor_b32 v{WA+1}, 32, v{WA}
    v_add_u32 v{WA+2}, {SB[1]}, v{WA}
    v_add_u32 v{WA+3}, {SB[1]}, v{WA+1}
    """)
    g2_setup(A, 40)
    A(f"s_add_u32 s{sWO}, s{sWO}, {2*4*40960}")
    A(f"""
    s_cmp_ge_u32 s{sNT}, 16
    s_cbranch_scc1 L_g1c_ns1
    s_mov_b32 s99, 0x3f803f80
    v_mov_b32 v40, 0
    v_mov_b32 v41, 0
    v_mov_b32 v42, 0
    v_mov_b32 v43, 0
    s_waitcnt vmcnt(0)
    """)
    for i in range(20):
        A(f"v_dot2c_f32_bf16 v{40+(i & 1)}, s99, v{16+i}")
        A(f"v_dot2c_f32_bf16 v{42+(i & 1)}, v{16+i}, v{16+i}")
    A("s_nop 3")
    A("v_add_f32 v40, v40, v41")
    A("v_add_f32 v41, v42, v43")
    for sh in (8, 4, 2, 1):
        for e in range(2):
            A(f"v_add_f32_dpp v{40+e}, v{40+e}, v{40+e} row_ror:{sh} row_mask:0xf bank_mask:0xf")
    A(f"""
    v_mul_f32 v40, {1.0/640!r}, v40
    v_mul_f32 v41, {1.0/640!r}, v41
    v_fma_f32 v41, -v40, v40, v41
    v_max_f32 v41, 0, v41
    v_cvt_pk_bf16_f32 v41, v41, v41
    v_lshlrev_b32 v41, 16, v41
    v_add_f32 v41, 0x3727c5ac, v41
    v_cvt_pk_bf16_f32 v41, v41, v41
    v_lshlrev_b32 v41, 16, v41
    v_sqrt_f32 v41, v41
    s_nop 0
    v_cvt_pk_bf16_f32 v13, v40, v41
    L_g1c_ns1:
    """)
    def reads(st, ks, fs):
        slot = st % 3
        F = FR + 48*fs
        hi = 2 if slot == 1 else 0
        so = SB[2] if slot == 2 else 0
        L = []
        for f4 in range(4):
            gu, fb = f4 // 2, f4 % 2
            for jj in range(2):
                L.append(f"ds_read_b64_tr_b16 v[{F+4*f4+2*jj}:{F+4*f4+2*jj+1}], v{WA+hi+fb} offset:{so + gu*8192 + ks*4096 + jj*512}")
        X = [f"ds_read_b128 v[{F+16+4*tb}:{F+19+4*tb}], v{XA+hi+ks} offset:{so + 2048*tb}" for tb in range(8)]
        return L[:2] + X[:1] + L[2:] + X[1:]
    ts(A, 1)
    A("s_barrier")
    ts(A, 2)
    tc(A, 13)
    for l in reads(0, 0, 0): A(l)
    nonce_issue(A, VN)
    CSR, STG = 16, 32
    step = 0
    for st in range(NST):
        for ks in range(2):
            fs = step & 1
            F = FR + 48*fs
            last = (st == NST-1 and ks == 1)
            A("s_waitcnt lgkmcnt(0)")
            if ks == 1: A("s_barrier")
            if last:
                tc(A, 14)
                ts(A, 6)
                pre = f"""
                s_lshl_b32 s100, s{sWN}, 7
                v_lshlrev_b32 v13, 4, v3
                s_add_u32 s100, s100, {CS_OFF}
                v_add_u32 v13, s100, v13
                s_lshl_b32 s101, s{sWM}, 9
                v_lshlrev_b32 v14, 2, v2
                s_add_u32 s101, s101, {ST_L}
                v_add_u32 v14, s101, v14
                """
                nxt = [x.strip() for x in pre.strip().split("\n")]
                for tb in range(8):
                    nxt.append(f"ds_read_b32 v{STG+tb}, v14 offset:{64*tb}")
                for f4 in range(4):
                    nxt.append(f"ds_read_b128 v[{CSR+4*f4}:{CSR+4*f4+3}], v13 offset:{(f4//2)*256 + (f4 % 2)*64}")
                post = f"""
                s_lshl_b32 s100, s{sMT}, 8
                s_lshl_b32 s101, s{sWM}, 7
                s_add_u32 s100, s100, s101
                s_lshr_b32 s74, s100, 4
                s_mul_i32 s74, s74, 54
                s_lshl_b32 s101, s{sNT}, 1
                s_add_u32 s101, s101, s{sWN}           ; kb
                s_add_u32 s74, s74, s101
                s_lshl_b32 s74, s74, 10
                s_lshr_b32 s100, s100, 7               ; mhalf
                s_lshl_b32 s100, s100, 8
                s_lshl_b32 s101, s101, 2
                s_add_u32 s100, s100, s101
                s_add_u32 s100, s100, {HF_OFF}
                """
                nxt += [x.strip() for x in post.strip().split("\n")]
            else:
                nxt = reads(st, 1, 1-fs) if ks == 0 else reads(st+1, 0, 1-fs)
            ri = 0
            for mi in range(32):
                tb, f4 = mi // 4, mi % 4
                ac = ACC + tb*16 + f4*4
                src = "0" if step == 0 else f"v[{ac}:{ac+3}]"
                A(f"v_mfma_f32_16x16x32_bf16 v[{ac}:{ac+3}], v[{F+4*f4}:{F+4*f4+3}], v[{F+16+4*tb}:{F+19+4*tb}], {src}")
                if last:
                    for _ in range(2 if mi < 4 or mi > 16 else 1):
                        if ri < len(nxt): A(nxt[ri]); ri += 1
                elif (mi % 3 != 2) and ri < len(nxt):
                    A(nxt[ri]); ri += 1
                if step == 3 and mi == 26:
                    A(f"""
                    s_waitcnt vmcnt(0)
                    v_readfirstlane_b32 s{sNON}, v{VN}
                    """)
                    nonce_ensure(A, VN)
                    A(f"""
                    s_cmp_ge_u32 s{sNT}, 16
                    s_cbranch_scc1 L_g1c_ns2
                    v_mov_b32 v12, v13
                    v_mov_b32 v13, s{sNON}
                    s_mov_b32 exec_lo, 0x00010001
                    s_mov_b32 exec_hi, 0x00010001
                    buffer_store_dwordx2 v[12:13], v14, {R(S4)}, 0 offen sc1
                    s_mov_b64 exec, -1
                    L_g1c_ns2:
                    """)
            while ri < len(nxt): A(nxt[ri]); ri += 1
            step += 1
    ts(A, 3)
    c1 = -2.0*math.log2(math.e)*math.sqrt(2.0/math.pi)
    c2 = c1*0.044715
    A(f"""
    s_setprio 2
    s_mov_b32 s96, {hex(f32bits(c1))}
    s_mov_b32 s97, {hex(f32bits(c2))}
    s_waitcnt lgkmcnt(0)
    """)
    K0 = 48
    T = 64
    for tb in range(8):
        g = STG + tb
        kk = K0 + 8*(tb & 1)
        NM, C1, C2, S2_ = kk, kk+2, kk+4, kk+6
        A(f"""
        v_and_b32 v{kk+1}, 0xffff0000, v{g}        ; s
        v_lshlrev_b32 v{NM}, 16, v{g}              ; m
        v_rcp_f32 v{kk+3}, v{kk+1}
        v_mul_f32 v{S2_}, v{kk+1}, v{kk+1}
        v_xor_b32 v{NM}, 0x80000000, v{NM}
        v_mul_f32 v{C1}, s96, v{kk+3}
        v_mul_f32 v{kk+5}, v{kk+3}, v{kk+3}
        v_mul_f32 v{C2}, s97, v{kk+3}
        v_mul_f32 v{C2}, v{C2}, v{kk+5}
        """)
        ag, au = ACC + tb*16, ACC + tb*16 + 8
        TT = T + 8*(tb & 1)
        bc = "op_sel_hi:[1,0,1]"
        P = range(4)
        for p in P: A(f"v_pk_fma_f32 v[{ag+2*p}:{ag+2*p+1}], v[{CSR+2*p}:{CSR+2*p+1}], v[{NM}:{NM+1}], v[{ag+2*p}:{ag+2*p+1}] {bc}")
        for p in P: A(f"v_pk_mul_f32 v[{TT+2*p}:{TT+2*p+1}], v[{ag+2*p}:{ag+2*p+1}], v[{ag+2*p}:{ag+2*p+1}]")
        for p in P: A(f"v_pk_fma_f32 v[{TT+2*p}:{TT+2*p+1}], v[{TT+2*p}:{TT+2*p+1}], v[{C2}:{C2+1}], v[{C1}:{C1+1}] op_sel_hi:[1,0,0]")
        for p in P: A(f"v_pk_mul_f32 v[{TT+2*p}:{TT+2*p+1}], v[{TT+2*p}:{TT+2*p+1}], v[{ag+2*p}:{ag+2*p+1}]")
        for p in P:
            A(f"v_exp_f32 v{TT+2*p}, v{TT+2*p}")
            A(f"v_exp_f32 v{TT+2*p+1}, v{TT+2*p+1}")
            A(f"v_pk_fma_f32 v[{au+2*p}:{au+2*p+1}], v[{CSR+8+2*p}:{CSR+8+2*p+1}], v[{NM}:{NM+1}], v[{au+2*p}:{au+2*p+1}] {bc}")
        for p in P: A(f"v_pk_fma_f32 v[{TT+2*p}:{TT+2*p+1}], v[{TT+2*p}:{TT+2*p+1}], v[{S2_}:{S2_+1}], v[{S2_}:{S2_+1}] op_sel_hi:[1,0,0]")
        for p in P:
            A(f"v_rcp_f32 v{TT+2*p}, v{TT+2*p}")
            A(f"v_rcp_f32 v{TT+2*p+1}, v{TT+2*p+1}")
            A(f"v_pk_mul_f32 v[{au+2*p}:{au+2*p+1}], v[{au+2*p}:{au+2*p+1}], v[{ag+2*p}:{ag+2*p+1}]")
        for p in P: A(f"v_pk_mul_f32 v[{TT+2*p}:{TT+2*p+1}], v[{TT+2*p}:{TT+2*p+1}], v[{au+2*p}:{au+2*p+1}]")
        O = 80 + 4*(tb % 4)
        for p in P: A(f"v_cvt_pk_bf16_f32 v{O+p}, v{TT+2*p}, v{TT+2*p+1}")
        A(f"buffer_store_dwordx4 v[{O}:{O+3}], v{L16}, {R(S3)}, s74 offen sc1")
        if tb < 7: A(f"s_add_u32 s74, s74, {54*1024}")
    ts(A, 4)
    A("s_setprio 0")
    L, D_ = A.label("L_wl"), A.label("L_wld")
    A(f"""
    s_lshl_b32 s101, s{sWV}, 2
    s_add_u32 s101, s101, {LF_OFF + 32}
    v_mov_b32 v13, s101
    s_mov_b32 s74, {SPIN*8}
    {L}:
    ds_read_b32 v14, v13
    s_waitcnt lgkmcnt(0)
    v_readfirstlane_b32 s101, v14
    s_cmp_lg_u32 s101, 0
    s_cbranch_scc1 {D_}
    s_sub_u32 s74, s74, 1
    s_cmp_lg_u32 s74, 0
    s_cbranch_scc1 {L}
    {D_}:
    """)
    for b in range(2):
        for l in wreads(b, b): A(l)
    A("s_waitcnt vmcnt(0)")
    flag_store(A, 13, "s100")
    ts(A, 5)
    A("s_branch L_g2_p3")

CV = dict(t0=4, t1=5, t2=6, fa=7, ga=8, ka=9, hl=10, hd=11, lf=12, xa=13, zw=14,
          fa0=226, ga0=227, ka0=228, hl0=229, zo=230, ho=231, zp0=232, hd2=233, l16=L16, acc=16, F=48, G=128)

def conv_setup(A):
    V = CV
    t0, t1, t2 = V["t0"], V["t1"], V["t2"]
    A(f"""
    s_and_b32 s{sHP}, s{sWV}, 1
    s_lshl_b32 s100, s{sHP}, 8             ; 256*hp
    s_lshl_b32 s101, s{sHP}, 11            ; 2048*hp
    v_add_u32 v{t2}, 1, v2
    v_and_b32 v{V['fa0']}, 3, v{t2}        ; j
    v_lshrrev_b32 v{t2}, 2, v{t2}
    v_lshlrev_b32 v{t2}, 4, v{t2}
    v_cmp_ne_u32 vcc, 0, v{V['fa0']}
    v_mul_u32_u24 v{V['fa0']}, 4160, v{V['fa0']}
    v_add_u32 v{V['fa0']}, v{V['fa0']}, v{t2}
    v_cndmask_b32 v{t2}, 0, 16, vcc
    v_add_u32 v{V['fa0']}, v{V['fa0']}, v{t2}
    v_lshlrev_b32 v{t2}, 4, v3
    v_sub_u32 v{V['fa0']}, v{V['fa0']}, v{t2}
    v_add_u32 v{V['fa0']}, 48, v{V['fa0']}
    v_add_u32 v{V['fa0']}, s100, v{V['fa0']}
    v_and_b32 v{V['ga0']}, 1, v2
    v_cmp_eq_u32 vcc, 1, v{V['ga0']}
    v_lshrrev_b32 v{V['ga0']}, 1, v2
    v_lshlrev_b32 v{V['ga0']}, 6, v{V['ga0']}
    v_add_u32 v{V['ga0']}, v{V['ga0']}, v{t2}
    v_mov_b32 v{t2}, {G1+4080-3584}
    v_mov_b32 v{t0}, {G0+4080-3584}
    v_cndmask_b32 v{t2}, v{t2}, v{t0}, vcc
    v_sub_u32 v{V['ga0']}, v{t2}, v{V['ga0']}
    v_add_u32 v{V['ga0']}, s100, v{V['ga0']}
    v_lshlrev_b32 v{t2}, 7, v3
    v_lshl_add_u32 v{V['zo']}, v2, 2, v{t2}
    v_add_u32 v{V['zo']}, s101, v{V['zo']}
    v_sub_u32 v{V['ka0']}, {G0+4092-1600}, v{V['zo']}
    v_add_u32 v{V['zo']}, 8192, v{V['zo']}
    v_lshlrev_b32 v{V['l16']}, 4, v1
    s_lshl_b32 s100, s{sHP}, 1
    v_and_b32 v{t1}, 1, v3
    v_add_u32 v{t1}, s100, v{t1}
    v_add_u32 v{t2}, v2, v{t1}
    v_subrev_u32 v{t2}, 16, v{t2}
    v_lshlrev_b32 v{V['ho']}, 2, v{t2}
    v_cmp_gt_i32 vcc, 0, v{t2}
    v_mov_b32 v{t2}, 0x7fff0000
    v_cndmask_b32 v{V['ho']}, v{V['ho']}, v{t2}, vcc
    v_cmp_ne_u32 vcc, 0, v{t1}
    v_mul_u32_u24 v{V['hl0']}, 4160, v{t1}
    v_cndmask_b32 v{t2}, 0, 16, vcc
    v_add_u32 v{V['hl0']}, v{V['hl0']}, v{t2}
    v_lshl_add_u32 v{V['hl0']}, v2, 2, v{V['hl0']}
    v_cmp_gt_u32 vcc, 32, v1
    v_mov_b32 v{t2}, {G1+4096-512}
    v_mov_b32 v{t0}, {G0+4096}
    v_cndmask_b32 v{t2}, v{t2}, v{t0}, vcc
    v_add_u32 v{V['zp0']}, v{t2}, v{V['l16']}
    s_lshl_b32 s100, s{sPR}, 3
    s_add_u32 s100, s100, {LF_OFF}
    v_mov_b32 v{V['lf']}, s100
    """)

def conv_srds(A):
    srd(A, S3, P_SSMK, SZ_SSM)
    srd(A, S4, P_WS, SZ_KR, KR_OFF)
    srd(A, S5, P_WS, SZ_ZT, ZT_OFF)

def load_F(A, ch, lb, hd):
    V = CV
    A(f"""
    s_lshl_b32 s100, s{ch}, 12
    buffer_load_dword v{hd}, v{V['ho']}, {R(S3)}, s100 offen
    s_lshl_b32 s101, s{sHP}, 3
    s_add_u32 s100, s100, s101
    s_mul_i32 s101, s{sHP}, 8336
    s_add_u32 s101, s101, s{lb}
    s_add_u32 m0, s101, 64
    """)
    for i in range(4):
        A(f"buffer_load_dwordx4 v{V['l16']}, {R(S3)}, s100 offen offset:{1024*i} lds")
    A(f"""
    s_lshl_b32 s74, s{sHP}, 4
    s_sub_u32 s101, s101, s74
    s_add_u32 m0, s101, {4176+64}
    s_add_u32 s100, s100, 4
    """)
    for i in range(4):
        A(f"buffer_load_dwordx4 v{V['l16']}, {R(S3)}, s100 offen offset:{1024*i} lds")
def load_G(A, ch, lb):
    V = CV
    A(f"""
    s_lshl_b32 s100, s{ch}, 12
    s_lshr_b32 s101, s{ch}, 6
    s_lshl_b32 s101, s101, 6
    s_add_u32 s101, s101, s{sHP}
    s_lshl_b32 s101, s101, 1
    s_add_u32 s100, s100, s101
    s_mul_i32 s101, s{sHP}, {G1-G0}
    s_add_u32 s101, s101, s{lb}
    s_add_u32 m0, s101, {G0}
    """)
    for i in range(4):
        A(f"buffer_load_dwordx4 v{V['l16']}, {R(S4)}, s100 offen offset:{1024*i}{SC} lds")
def zero_pads(A, lb, z4, t):
    A(f"""
    v_add_u32 v{t}, s{lb}, v{CV['zp0']}
    v_mov_b32 v{z4}, 0
    v_mov_b32 v{z4+1}, 0
    v_mov_b32 v{z4+2}, 0
    v_mov_b32 v{z4+3}, 0
    ds_write_b128 v{t}, v[{z4}:{z4+3}]
    """)
def kv_poll(A, v, va, full=False):
    L, D_ = A.label("L_kvp"), A.label("L_kvd")
    A(f"""
    s_mov_b32 s74, {SPIN}
    {L}:
    buffer_load_dword v{v}, v{va}, {R(S7)}, s{sKVF} offen sc1
    s_waitcnt vmcnt(0)
    v_cmp_ne_u32 vcc, s{sNON}, v{v}
    {"s_cmp_eq_u64 vcc, 0" if full else "s_cmp_eq_u32 vcc_lo, 0"}
    s_cbranch_scc1 {D_}
    s_sub_u32 s74, s74, 1
    s_cmp_lg_u32 s74, 0
    s_cbranch_scc1 {L}
    {D_}:
    """)

def pair_signal(A, k):
    V = CV
    A(f"""
    s_lshl_b32 s100, s{sTASK}, 2
    s_add_u32 s100, s100, {k}
    s_lshl_b32 s101, s{sHP}, 2
    v_mov_b32 v{V['t0']}, s100
    v_add_u32 v{V['t1']}, s101, v{V['lf']}
    ds_write_b32 v{V['t1']}, v{V['t0']}
    """)
def pair_wait(A, k):
    V = CV
    L, D_ = A.label("L_pw"), A.label("L_pwd")
    A(f"""
    s_lshl_b32 s100, s{sTASK}, 2
    s_add_u32 s100, s100, {k}
    s_lshl_b32 s101, s{sHP}, 2
    s_xor_b32 s101, s101, 4
    v_add_u32 v{V['t1']}, s101, v{V['lf']}
    s_mov_b32 s99, {SPIN*8}
    {L}:
    ds_read_b32 v{V['t0']}, v{V['t1']}
    s_waitcnt lgkmcnt(0)
    v_readfirstlane_b32 s101, v{V['t0']}
    s_cmp_ge_u32 s101, s100
    s_cbranch_scc1 {D_}
    s_sub_u32 s99, s99, 1
    s_cmp_lg_u32 s99, 0
    s_cbranch_scc1 {L}
    {D_}:
    """)

def w_landed(A, t0, t1):
    A(f"""
    s_lshl_b32 s100, s{sWV}, 2
    s_add_u32 s100, s100, {LF_OFF + 32 - 16}
    v_mov_b32 v{t0}, s100
    v_mov_b32 v{t1}, 1
    ds_write_b32 v{t0}, v{t1}
    """)

def conv_task(A):
    V = CV
    ACC, Fb, Gb = V["acc"], V["F"], V["G"]
    A("L_conv:")
    A(f"""
    s_lshr_b32 s100, s{sCH}, 1
    s_lshl_b32 s100, s100, 2
    s_load_dword s{sD}, s[{P_SSMD}:{P_SSMD+1}], s100
    v_add_u32 v{V['fa']}, s{sLB}, v{V['fa0']}
    v_add_u32 v{V['ga']}, s{sLB}, v{V['ga0']}
    v_add_u32 v{V['ka']}, s{sLB}, v{V['ka0']}
    v_add_u32 v{V['hl']}, s{sLB}, v{V['hl0']}
    v_add_u32 v{V['xa']}, s{sLB}, v{V['l16']}
    v_add_u32 v{V['zw']}, s{sLB}, v{V['zo']}
    s_bitcmp0_b32 s{sGL}, 0
    s_cbranch_scc1 L_conv_nw
    s_bitcmp1_b32 s{sGL}, 3
    s_cbranch_scc1 L_conv_w20
    s_waitcnt vmcnt(0)
    L_conv_w20:
    s_waitcnt vmcnt(20)
    s_bitcmp0_b32 s{sGL}, 1
    s_cbranch_scc1 L_conv_nh
    ds_write_b32 v{V['hl']}, v{V['hd']}
    L_conv_nh:
    s_cmp_eq_u32 s{sHP}, 0
    s_cbranch_scc1 L_conv_nw
    s_add_u32 s100, s{sLB}, {G1+4094}
    v_mov_b32 v{V['t0']}, s100
    v_mov_b32 v{V['t1']}, 0
    s_mov_b64 exec, 1
    ds_write_b16 v{V['t0']}, v{V['t1']}
    s_bitcmp0_b32 s{sGL}, 4
    s_cbranch_scc1 L_conv_nf2
    v_add_u32 v{V['t0']}, {4*CONV_WSZ}, v{V['t0']}
    ds_write_b16 v{V['t0']}, v{V['t1']}
    L_conv_nf2:
    s_mov_b64 exec, -1
    L_conv_nw:
    s_bitcmp0_b32 s{sGL}, 5
    s_cbranch_scc1 L_conv_ncw
    """)
    lds_wait_min(A, 4, 12, 1, Fb)
    A(f"""
    L_conv_ncw:
    s_waitcnt lgkmcnt(0)
    s_bitcmp1_b32 s{sCH}, 0
    s_cbranch_scc1 L_conv_odd
    s_lshl_b32 s{sD}, s{sD}, 16
    L_conv_odd:
    s_and_b32 s{sD}, s{sD}, 0xffff0000
    """)
    pair_signal(A, 1)
    pair_wait(A, 1)
    ts(A, 6)
    order = mfma_order()
    def reads(r):
        buf = r & 1
        lst = [("F", 0)] + [("G", c) for c in range(8)] + [("F", p) for p in range(1, 8)]
        out = []
        for kind, i in lst:
            if kind == "F":
                reg = Fb + buf*32 + 4*i
                out.append(f"ds_read_b128 v[{reg}:{reg+3}], v{V['fa']} offset:{512*i + 64*r}")
            else:
                reg = Gb + buf*32 + 4*i
                out.append(f"ds_read_b128 v[{reg}:{reg+3}], v{V['ga']} offset:{3584 - 512*i + 64*r}")
        return out
    for l in reads(0): A(l)
    NR = 4
    ob = Fb
    for r in range(NR):
        buf = r & 1
        nxt = reads(r + 1) if r < NR-1 else [f"ds_read_b32 v{ob + 2*q + hh}, v{V['ka']} offset:{1600 - 512*q - 64*hh}" for q in range(4) for hh in range(2)]
        seen = set()
        for k, (p, c) in enumerate(order):
            q = p + c
            fr = Fb + buf*32 + 4*p; gr = Gb + buf*32 + 4*c
            if k == 0:
                A("s_waitcnt lgkmcnt(0)")
            src = "0" if (r == 0 and q not in seen) else f"v[{ACC+4*q}:{ACC+4*q+3}]"
            seen.add(q)
            A(f"v_mfma_f32_16x16x32_bf16 v[{ACC+4*q}:{ACC+4*q+3}], v[{gr}:{gr+3}], v[{fr}:{fr+3}], {src}")
            if k == 1 and r == NR-1: pair_signal(A, 2)
            if k == 33 and r == 1:
                A(f"""
                s_cmp_eq_u32 s{sTASK}, 0
                s_cbranch_scc1 L_conv_npf
                s_waitcnt vmcnt(0)
                """)
                flag_store(A, V['t0'], f"s{sZD}")
                A("L_conv_npf:")
            if k == 1 and r == 2:
                A(f"""
                s_bitcmp0_b32 s{sGL}, 2
                s_cbranch_scc1 L_conv_nwl
                s_waitcnt vmcnt(0)
                """)
                w_landed(A, V['t0'], V['t1'])
                A("L_conv_nwl:")
            if k % 2 == 0 and k // 2 < len(nxt): A(nxt[k // 2])
    pair_wait(A, 2)
    A(f"""
    s_cmp_eq_u32 s{sHP}, 0
    s_cbranch_scc1 L_conv_x0
    """)
    for q in range(4): A(f"ds_write_b128 v{V['xa']}, v[{ACC+4*q}:{ACC+4*q+3}] offset:{4096 + 1024*q}")
    for i in range(16): A(f"v_mov_b32 v{ACC+i}, v{ACC+16+i}")
    A(f"s_branch L_conv_x1")
    A("L_conv_x0:")
    for q in range(4): A(f"ds_write_b128 v{V['xa']}, v[{ACC+16+4*q}:{ACC+16+4*q+3}] offset:{1024*q}")
    A("L_conv_x1:")
    A("s_waitcnt lgkmcnt(0)")
    pair_signal(A, 3)
    pair_wait(A, 3)
    A(f"""
    s_xor_b32 s100, s{sHP}, 1
    s_lshl_b32 s100, s100, 12
    v_add_u32 v{V['t2']}, s100, v{V['xa']}
    """)
    for q in range(4): A(f"ds_read_b128 v[{ACC+16+4*q}:{ACC+16+4*q+3}], v{V['t2']} offset:{1024*q}")
    t0, t1 = V["t2"], V["hd"]
    for q in range(4):
        A(f"s_waitcnt lgkmcnt({3-q})" if q == 0 else f"s_waitcnt lgkmcnt({3-q+2*q})")
        for hh in range(2):
            kvr = ob + 2*q + hh
            a0 = ACC + 4*q + 2*hh
            A(f"""
            v_and_b32 v{V['t0']}, 0xffff0000, v{kvr}
            v_lshlrev_b32 v{t1}, 16, v{kvr}
            v_add_f32 v{a0}, v{a0}, v{a0+16}
            v_add_f32 v{a0+1}, v{a0+1}, v{a0+17}
            v_fmac_f32 v{a0}, s{sD}, v{V['t0']}
            v_fmac_f32 v{a0+1}, s{sD}, v{t1}
            v_cvt_pk_bf16_f32 v{kvr}, v{a0}, v{a0+1}
            ds_write_b32 v{V['zw']}, v{kvr} offset:{512*q + 64*hh}
            """)
    A(f"""
    s_lshl_b32 s100, s{sHP}, 11
    s_lshl_b32 s74, s{sCH}, 12
    s_add_u32 s74, s74, s100
    s_add_u32 s100, s100, 8192
    v_add_u32 v{t0}, s100, v{V['xa']}
    s_waitcnt lgkmcnt(0)
    ds_read_b128 v[{ACC}:{ACC+3}], v{t0}
    ds_read_b128 v[{ACC+4}:{ACC+7}], v{t0} offset:1024
    s_waitcnt lgkmcnt(0)
    buffer_store_dwordx4 v[{ACC}:{ACC+3}], v{V['l16']}, {R(S5)}, s74 offen sc1
    buffer_store_dwordx4 v[{ACC+4}:{ACC+7}], v{V['l16']}, {R(S5)}, s74 offen offset:1024 sc1
    """)
    pair_signal(A, 4)
    ts(A, 7)
    A(f"""
    s_mul_i32 s74, s{sHP}, 2560
    s_lshl_b32 s101, s{sCH}, 2
    s_add_u32 s74, s74, s101
    s_add_u32 s{sZD}, s74, {ZF_OFF}
    s_add_u32 s100, s{sTASK}, 1
    s_cmp_ge_u32 s100, s{sNTASK}
    s_cbranch_scc1 L_conv_done
    s_mov_b32 s{sTASK}, s100
    s_add_u32 s{sCH}, s{sCH}, 4
    s_add_u32 s{sLB}, s{sLB}, {4*CONV_WSZ}
    s_mov_b32 s{sGL}, 0
    s_branch L_conv
    L_conv_done:
    s_cmp_ge_u32 s{sSLOT}, 27
    s_cbranch_scc1 L_conv_dd
    s_mov_b32 s{sZP}, s{sZD}
    """)
    for b in range(2):
        for l in wreads(b, b): A(l)
    g2_srds(A)
    A("s_branch L_g2_p3")
    A("L_conv_dd:")
    A("s_waitcnt vmcnt(0)")
    flag_store(A, V['t0'], f"s{sZD}")
    g2_srds(A)
    g2_setup(A, 16)
    lds_wait_min(A, 4, 0, 4, 16)
    lds_wait_min(A, 4, 4, 8, 16)
    A("s_branch L_g2_iss")

def g1_loader(A):
    VA, VB, CA, CSA, TMP, ONE, VN = 192, 200, 202, 208, 240, 216, 15
    VKF, VL4, VST = 20, 21, 22
    srd(A, S0, P_Q, SZ_X)
    srd(A, S1, P_WG, SZ_W1)
    srd(A, S2, P_WU, SZ_W1)
    A(f"""
    s_sub_u32 s96, s{sWV}, 4               ; lw
    v_lshrrev_b32 v4, 3, v1                ; l/8
    v_and_b32 v5, 7, v1                    ; l%8
    s_lshl_b32 s101, s96, 4
    v_add_u32 v6, s101, v4                 ; k row
    v_mul_u32_u24 v6, 3456, v6
    v_and_b32 v7, 1, v3
    v_lshlrev_b32 v7, 1, v7
    v_xor_b32 v7, v7, v5
    v_xor_b32 v8, 4, v7
    s_lshl_b32 s101, s{sNT}, 7
    v_add_u32 v6, s101, v6
    v_lshl_add_u32 v{VB}, v7, 4, v6
    v_lshl_add_u32 v{VB+1}, v8, 4, v6
    v_add_u32 v{VB+1}, {8*3456 - 1024}, v{VB+1}
    s_lshl_b32 s32, s96, 13                ; lw*8192
    s_lshl_b32 s33, s96, 11                ; lw*2048
    s_lshl_b32 s100, s{sMT}, 8
    s_lshl_b32 s101, s96, 6
    s_add_u32 s83, s100, s101
    v_add_u32 v6, s83, v4
    v_mul_u32_u24 v6, 1280, v6
    v_xor_b32 v7, v5, v3
    v_xor_b32 v8, 4, v7
    v_lshl_add_u32 v7, v7, 4, v6
    v_lshl_add_u32 v8, v8, 4, v6
    """)
    for i in range(8):
        A(f"v_add_u32 v{VA+i}, {10240*i - 1024*(i % 4)}, v{7 + (i & 1)}")
    def issue(st):
        sb = SB[st % 3]
        A(f"s_mov_b32 s100, {st*128}")
        A(f"s_mov_b32 s101, {st*64*3456}")
        A(f"s_add_u32 m0, s33, {sb + OFF_BG}")
        for i in range(2): A(f"buffer_load_dwordx4 v{VB+i}, {R(S1)}, s101 offen offset:{1024*i} lds")
        A(f"s_add_u32 m0, s33, {sb + OFF_BU}")
        for i in range(2): A(f"buffer_load_dwordx4 v{VB+i}, {R(S2)}, s101 offen offset:{1024*i} lds")
        for hh in range(2):
            A(f"s_add_u32 m0, s32, {sb + hh*4096}")
            for i in range(4): A(f"buffer_load_dwordx4 v{VA+4*hh+i}, {R(S0)}, s100 offen offset:{1024*i} lds")
    issue(0); issue(1); issue(2)
    A(f"""
    s_cmp_lg_u32 s{sWV}, 4
    s_cbranch_scc1 L_g1l_np
    v_mov_b32 v4, {LF_OFF}
    v_mov_b32 v8, 0
    v_mov_b32 v9, 0
    v_mov_b32 v10, 0
    v_mov_b32 v11, 0
    ds_write_b128 v4, v[8:11]
    ds_write_b128 v4, v[8:11] offset:16
    ds_write_b128 v4, v[8:11] offset:32
    L_g1l_np:
    v_lshrrev_b32 v4, 2, v2
    v_lshl_add_u32 v4, v3, 3, v4           ; k
    v_and_b32 v5, 3, v2
    v_lshlrev_b32 v5, 3, v5
    s_lshr_b32 s100, s96, 1
    s_lshl_b32 s100, s100, 6
    v_add_u32 v5, s100, v5
    v_bfe_u32 v6, v2, 3, 1
    v_lshlrev_b32 v6, 5, v6
    v_xor_b32 v5, v5, v6
    v_and_b32 v6, 1, v3
    v_lshlrev_b32 v6, 6, v6
    v_xor_b32 v5, v5, v6
    v_lshl_add_u32 v{CA}, v4, 7, v5
    s_and_b32 s100, s96, 1
    s_lshl_b32 s100, s100, 13
    s_add_u32 s100, s100, {OFF_BG}
    v_add_u32 v{CA}, s100, v{CA}
    v_xor_b32 v{CA+1}, 32, v{CA}
    v_add_u32 v{CA+2}, {SB[1]}, v{CA}
    v_add_u32 v{CA+3}, {SB[1]}, v{CA+1}
    v_lshlrev_b32 v{VL4}, 2, v1
    s_bfe_u32 s{sPR}, s{sWV}, 0x10001
    """)
    for i in range(4): A(f"v_mov_b32 v{ONE+i}, 0x3f803f80")
    g2_setup(A, 24)
    conv_setup(A)
    conv_srds(A)
    def colsum(st):
        slot = st % 3
        hi = 2 if slot == 1 else 0
        so = SB[2] if slot == 2 else 0
        n = 0
        for ks in range(2):
            for fb in range(2):
                for jj in range(2):
                    A(f"ds_read_b64_tr_b16 v[{TMP+2*n}:{TMP+2*n+1}], v{CA+hi+fb} offset:{so + ks*4096 + jj*512}")
                    n += 1
        for n in range(4):
            fb = n % 2
            A(f"s_waitcnt lgkmcnt({6-2*n})")
            src = "0" if (st == 0 and n < 2) else f"v[{CSA+4*fb}:{CSA+4*fb+3}]"
            A(f"v_mfma_f32_16x16x32_bf16 v[{CSA+4*fb}:{CSA+4*fb+3}], v[{TMP+4*n}:{TMP+4*n+3}], v[{ONE}:{ONE+3}], {src}")
    A(f"""
    s_mul_i32 s100, s{sXCD}, {NCV}
    s_add_u32 s100, s100, s{sSLOT}
    s_lshl_b32 s100, s100, 1
    s_add_u32 s100, s100, {40*NTD}
    s_add_u32 s97, s100, s{sPR}            ; channel (s97)
    s_lshr_b32 s101, s100, 6
    s_lshl_b32 s{sKVF}, s101, 7
    s_add_u32 s{sKVF}, s{sKVF}, {KVF_OFF}
    s_mul_i32 s96, s{sPR}, {CONV_WSZ}
    s_add_u32 s96, s96, {A_AREA}           ; area (s96)
    s_mov_b32 s{sGL}, 7
    v_add_u32 v24, s83, v1
    v_lshlrev_b32 v24, 3, v24
    s_waitcnt vmcnt(24)
    """)
    ts(A, 1)
    A("s_barrier")
    for st in range(NST):
        if st == 8:
            A(f"""
            s_cmp_ge_u32 s{sSLOT}, {NCV}
            s_cbranch_scc1 L_g1l_c8n
            """)
            load_F(A, 97, 96, CV['hd'])
            zero_pads(A, 96, 28, 25)
            colsum(8)
            A(f"""
            s_waitcnt vmcnt(9)
            v_cmp_ne_u32 vcc, s{sNON}, v{VKF}
            s_cmp_eq_u32 s{sNON}, 0
            s_cbranch_scc1 L_g1l_c8d
            s_cmp_lg_u32 vcc_lo, 0
            s_cbranch_scc1 L_g1l_c8d
            """)
            load_G(A, 97, 96)
            A(f"s_mov_b32 s{sGL}, 15")
            A("s_branch L_g1l_c8d")
            A("L_g1l_c8n:")
            colsum(8)
            A("s_waitcnt vmcnt(0)")
            A("L_g1l_c8d:")
            A("s_barrier")
            for l in issueW(0, sRBC, sWOC): A(l)
            for l in issueW(0): A(l)
            continue
        colsum(st)
        if st < NST-1:
            A(f"s_waitcnt vmcnt({13 if st == 4 else 14 if st == 7 else 12})")
            if st == 5: A(f"v_readfirstlane_b32 s{sNON}, v{VN}")
            A("s_barrier")
            if st == 3: nonce_issue(A, VN)
            if st + 3 < NST: issue(st + 3)
            if st == 6:
                srd(A, S1, P_WD, SZ_WD)
                srd(A, S2, P_WS, SZ_ST, ST_OFF)
                A(f"buffer_load_dwordx2 v[{VST}:{VST+1}], v24, {R(S2)}, 0 offen sc1")
                A(f"buffer_load_dword v{VKF}, v{VL4}, {R(S7)}, s{sKVF} offen sc1")
    nonce_ensure(A, VN)
    L, D_ = A.label("L_stc"), A.label("L_stok")
    A(f"""
    s_mov_b32 s74, {SPIN}
    {L}:
    v_cmp_ne_u32 vcc, s{sNON}, v{VST+1}
    s_cmp_eq_u64 vcc, 0
    s_cbranch_scc1 {D_}
    buffer_load_dwordx2 v[{VST}:{VST+1}], v24, {R(S2)}, 0 offen sc1
    s_waitcnt vmcnt(0)
    s_sub_u32 s74, s74, 1
    s_cmp_lg_u32 s74, 0
    s_cbranch_scc1 {L}
    {D_}:
    s_sub_u32 s100, s{sWV}, 4
    s_lshl_b32 s101, s100, 8
    s_add_u32 s101, s101, {ST_L}
    v_add_u32 v25, s101, v{VL4}
    ds_write_b32 v25, v{VST}
    s_lshr_b32 s101, s100, 1
    s_lshl_b32 s101, s101, 7
    s_and_b32 s100, s100, 1
    s_lshl_b32 s100, s100, 8
    s_add_u32 s100, s100, s101
    s_add_u32 s100, s100, {CS_OFF}
    v_lshlrev_b32 v25, 4, v3
    v_add_u32 v25, s100, v25
    s_mov_b32 exec_lo, 0x00010001
    s_mov_b32 exec_hi, 0x00010001
    ds_write_b128 v25, v[{CSA}:{CSA+3}]
    ds_write_b128 v25, v[{CSA+4}:{CSA+7}] offset:64
    s_mov_b64 exec, -1
    s_waitcnt lgkmcnt(0)
    s_barrier
    """)
    ts(A, 3)
    for l in issueW(1, sRBC, sWOC): A(l)
    for l in issueW(1): A(l)
    A(f"""
    s_cmp_ge_u32 s{sSLOT}, {NCV}
    s_cbranch_scc1 L_g2_lentry
    s_cmp_lg_u32 s{sGL}, 7
    s_cbranch_scc1 L_g1l_gd
    """)
    kv_poll(A, VKF, VL4)
    load_G(A, 97, 96)
    A(f"""
    L_g1l_gd:
    s_mov_b32 s{sCH}, s97
    s_mov_b32 s{sLB}, s96
    s_mov_b32 s{sTASK}, 0
    s_mov_b32 s{sNTASK}, 1
    s_branch L_conv
    """)

def prep(A):
    KR, VR, KV, VF, TP, KF, OUT, SK = 16, 64, 100, 116, 128, 160, 192, 192
    B0 = 13
    VN = 124
    V = CV
    HD = [234, 235, 236]
    srd(A, S0, P_K, SZ_X)
    srd(A, S1, P_V, SZ_X)
    srd(A, S2, P_SH, 640*8)
    conv_srds(A)
    A(f"""
    s_mul_i32 s96, s{sXCD}, 5
    s_add_u32 s96, s96, s{sSLOT}
    s_sub_u32 s86, s96, 27                 ; p
    s_mul_i32 s97, s86, 52
    s_lshr_b32 s97, s97, 8                 ; te = p/5
    s_mul_i32 s98, s97, 5
    s_sub_u32 s95, s86, s98                ; p%5
    s_cmp_ge_u32 s{sWV}, 4
    s_cselect_b32 s98, 5, 0
    s_add_u32 s98, s98, s95
    s_and_b32 s100, s{sWV}, 3
    s_lshl_b32 s96, s97, 2
    s_add_u32 s96, s96, s100
    s_lshl_b32 s99, s96, 6                 ; T0
    s_sub_u32 s100, s99, 4
    s_mul_i32 s100, s100, 1280
    s_lshl_b32 s101, s98, 7
    s_add_u32 s100, s100, s101
    v_lshrrev_b32 v8, 3, v1                ; tg
    v_and_b32 v9, 7, v1                    ; cg
    v_mul_u32_u24 v{B0}, 10240, v8
    v_lshl_add_u32 v{B0}, v9, 4, v{B0}
    v_add_u32 v{B0}, s100, v{B0}
    v_add_u32 v{B0+1}, 5120, v{B0}
    v_add_u32 v{B0+2}, 10240, v{B0}
    s_lshl_b32 s87, s98, 9
    v_lshlrev_b32 v10, 6, v9
    s_mul_i32 s86, s86, {NTD}              ; ch0
    s_lshr_b32 s100, s{sWV}, 1
    s_xor_b32 s{sPR}, s100, 2
    s_add_u32 s{sCH}, s86, s100
    s_mul_i32 s{sLB}, s100, {CONV_WSZ}
    s_cmp_ge_u32 s{sWV}, 4
    s_cbranch_scc1 L_pr_lF
    s_setprio 3
    s_branch L_pr_ld
    L_pr_lF:
    """)
    conv_setup(A)
    A(f"""
    s_cmp_lg_u32 s{sWV}, 6
    s_cbranch_scc1 L_pr_nz
    v_mov_b32 v4, {LF_OFF}
    v_mov_b32 v16, 0
    v_mov_b32 v17, 0
    v_mov_b32 v18, 0
    v_mov_b32 v19, 0
    ds_write_b128 v4, v[16:19]
    ds_write_b128 v4, v[16:19] offset:16
    ds_write_b128 v4, v[16:19] offset:32
    ds_write_b128 v4, v[16:19] offset:48
    s_waitcnt lgkmcnt(0)
    L_pr_nz:
    s_barrier
    s_sub_u32 s84, s{sCH}, 2
    s_sub_u32 s85, s{sLB}, {2*CONV_WSZ}
    """)
    for a in range(3):
        load_F(A, 84, 85, HD[a])
        if a < 2:
            A("s_add_u32 s84, s84, 2")
            A(f"s_add_u32 s85, s85, {2*CONV_WSZ}")
    A("L_pr_ld:")
    for i in range(4):
        A(f"buffer_load_dwordx4 v[{SK+4*i}:{SK+4*i+3}], v10, {R(S2)}, s87 offen offset:{16*i}")
    def ldk(r): A(f"buffer_load_dwordx4 v[{KR+4*r}:{KR+4*r+3}], v{B0+r//4}, {R(S0)}, 0 offen offset:{(r % 4)*1280}")
    def ldv(i):
        r = i + 4
        A(f"buffer_load_dwordx4 v[{VR+4*i}:{VR+4*i+3}], v{B0+r//4}, {R(S1)}, 0 offen offset:{(r % 4)*1280}")
    for r in range(1, 4): ldk(r)
    for i in range(8): ldk(i+4); ldv(i)
    ts(A, 16)
    A(f"""
    v_lshlrev_b32 v120, 12, v8
    v_lshl_add_u32 v120, v9, 4, v120
    s_mul_i32 s83, s98, {KRG}
    s_sub_u32 s100, 1984, s99
    s_lshl_b32 s100, s100, 1
    s_add_u32 s83, s83, s100
    s_lshl_b32 s100, s98, 7
    s_lshl_b32 s101, s96, 2
    s_add_u32 s100, s100, s101
    s_add_u32 s95, s100, {KVF_OFF}
    v_sub_u32 v10, 7, v8
    v_xor_b32 v10, v10, v9
    v_lshlrev_b32 v10, 4, v10
    v_lshlrev_b32 v123, 4, v9
    s_cmp_ge_u32 s{sWV}, 4
    s_cbranch_scc1 L_pr_l0
    """)
    conv_setup(A)
    A(f"""
    s_mul_i32 s100, s{sHP}, {G1-G0}
    s_add_u32 s100, s100, s{sLB}
    s_add_u32 s100, s100, {G0}
    v_lshl_add_u32 v121, v9, 10, v10
    v_lshrrev_b32 v122, 2, v9
    v_mul_u32_u24 v122, {4*CONV_WSZ - 4096}, v122
    v_add3_u32 v121, s100, v121, v122
    v_lshlrev_b32 v122, 7, v8
    v_add_u32 v122, s100, v122
    s_barrier
    s_waitcnt vmcnt(19)
    s_branch L_pr_l1
    L_pr_l0:
    s_mul_i32 s100, s{sHP}, {G1-G0}
    s_add_u32 s100, s100, s{sLB}
    s_add_u32 s100, s100, {G0}
    v_lshl_add_u32 v121, v9, 9, v10
    v_add_u32 v121, s100, v121
    v_lshrrev_b32 v10, 2, v8               ; (l>>5)
    v_bfe_u32 v122, v1, 3, 2
    v_lshlrev_b32 v122, 7, v122
    v_lshl_add_u32 v122, v10, 9, v122
    v_add_u32 v122, s100, v122
    v_lshlrev_b32 v10, 4, v10
    v_xor_b32 v123, v123, v10              ; col ^ (l>>5)
    v_lshrrev_b32 v10, 5, v1
    v_bfe_u32 v120, v1, 3, 2
    v_lshl_add_u32 v120, v10, 3, v120
    v_lshlrev_b32 v120, 12, v120
    v_lshl_add_u32 v120, v9, 4, v120
    s_sub_u32 s85, s85, {4*CONV_WSZ}
    v_add_u32 v4, s85, v{V['hl0']}
    s_sub_u32 s100, s{sWV}, 4
    s_lshl_b32 s100, s100, 2
    s_add_u32 s100, s100, {LF_OFF + 48}
    v_mov_b32 v5, s100
    v_mov_b32 v6, 1
    s_waitcnt vmcnt(19)
    ds_write_b32 v4, v{HD[0]}
    ds_write_b32 v4, v{HD[1]} offset:{2*CONV_WSZ}
    v_add_u32 v4, {4*CONV_WSZ}, v4
    ds_write_b32 v4, v{HD[2]}
    s_waitcnt lgkmcnt(0)
    ds_write_b32 v5, v6
    L_pr_l1:
    """)
    for cp in range(4):
        for j in range(4):
            for e in range(2):
                src = SK + 2*(2*cp + e) + j//2
                d = TP + 8*cp + 2*j + e
                if j % 2 == 0: A(f"v_lshlrev_b32 v{d}, 16, v{src}")
                else: A(f"v_and_b32 v{d}, 0xffff0000, v{src}")
    nonce_issue(A, VN)
    ts(A, 17)
    def unpk(r):
        for cp in range(4):
            d = KF + 8*(r % 4) + 2*cp
            A(f"v_lshlrev_b32 v{d}, 16, v{KR+4*r+cp}")
            A(f"v_and_b32 v{d+1}, 0xffff0000, v{KR+4*r+cp}")
    pr = lambda b: f"v[{b}:{b+1}]"
    A("s_waitcnt vmcnt(17)")
    ts(A, 1)
    for r in range(1, 4): unpk(r)
    for i in range(8):
        A(f"s_waitcnt vmcnt({1 + 2*(7-i) + 1})")
        unpk(i+4)
        cur = KV + 8*(i & 1); prv = KV + 8*(1 - (i & 1))
        kf = lambda r, cp: pr(KF + 8*(r % 4) + 2*cp)
        for cp in range(4): A(f"v_pk_mul_f32 {pr(cur+2*cp)}, {kf(i+1, cp)}, {pr(TP+8*cp+6)}")
        for j in (2, 1, 0):
            for cp in range(4): A(f"v_pk_fma_f32 {pr(cur+2*cp)}, {kf(i+4-j, cp)}, {pr(TP+8*cp+2*j)}, {pr(cur+2*cp)}")
        A(f"s_waitcnt vmcnt({1 + 2*(7-i)})")
        for cp in range(4):
            vf = VF + 2*(cp & 1)
            A(f"v_lshlrev_b32 v{vf}, 16, v{VR+4*i+cp}")
            A(f"v_and_b32 v{vf+1}, 0xffff0000, v{VR+4*i+cp}")
            A(f"v_pk_mul_f32 {pr(cur+2*cp)}, {pr(cur+2*cp)}, v[{vf}:{vf+1}]")
        if i % 2 == 1:
            j = (7-i)//2
            for c in range(8):
                A(f"v_cvt_pk_bf16_f32 v{OUT + 4*c + j}, v{cur+c}, v{prv+c}")
        if i in (0, 3, 6, 7): ts(A, 18 + (0, 3, 6, 7).index(i))
    A(f"""
    v_lshlrev_b32 v{V['l16']}, 4, v1
    s_waitcnt vmcnt(0)
    v_readfirstlane_b32 s{sNON}, v{VN}
    s_cmp_ge_u32 s{sWV}, 4
    s_cbranch_scc1 L_pr_l2
    """)
    RD = 64
    for c in range(8): A(f"ds_write_b128 v121, v[{OUT+4*c}:{OUT+4*c+3}] offset:{128*c}")
    for sx in range(8):
        if sx == 4: A(f"v_add_u32 v122, {4*CONV_WSZ}, v122")
        A(f"v_xor_b32 v{16+sx}, {16*sx}, v123")
        A(f"v_add_u32 v{16+sx}, v{16+sx}, v122")
    A("s_waitcnt lgkmcnt(0)")
    for sx in range(8):
        A(f"ds_read_b128 v[{RD+4*sx}:{RD+4*sx+3}], v{16+sx} offset:{1024*(sx % 4)}")
    for sx in range(8):
        A(f"s_waitcnt lgkmcnt({7-sx})")
        A(f"buffer_store_dwordx4 v[{RD+4*sx}:{RD+4*sx+3}], v120, {R(S4)}, s83 offen sc1")
        if sx < 7: A("s_add_u32 s83, s83, 32768")
    A("s_branch L_pr_l3")
    A("L_pr_l2:")
    for sx in range(4):
        A(f"v_xor_b32 v{16+sx}, {32*sx}, v123")
        A(f"v_add_u32 v{16+sx}, v{16+sx}, v122")
    for ps in range(2):
        for c in range(4): A(f"ds_write_b128 v121, v[{OUT+16*ps+4*c}:{OUT+16*ps+4*c+3}] offset:{128*c}")
        A("s_waitcnt lgkmcnt(0)")
        for sx in range(4):
            A(f"ds_read_b128 v[{RD+16*ps+4*sx}:{RD+16*ps+4*sx+3}], v{16+sx} offset:{1024*sx}")
        for sx in range(4):
            A(f"s_waitcnt lgkmcnt({3-sx})")
            A(f"s_add_u32 s100, s83, {65536*sx + 16384*ps}")
            A(f"buffer_store_dwordx4 v[{RD+16*ps+4*sx}:{RD+16*ps+4*sx+3}], v120, {R(S4)}, s100 offen sc1")
    A("L_pr_l3:")
    ts(A, 2)
    A("s_waitcnt vmcnt(0)")
    nonce_ensure(A, VN)
    flag_store(A, 16, "s95")
    ts(A, 3)
    A(f"""
    s_lshr_b32 s100, s86, 6
    s_add_u32 s101, s86, {NTD-1}
    s_lshr_b32 s101, s101, 6
    s_sub_u32 s101, s101, s100
    s_lshl_b32 s{sKVF}, s100, 7
    s_add_u32 s{sKVF}, s{sKVF}, {KVF_OFF}
    s_lshl_b32 s101, s101, 5
    s_add_u32 s101, s101, 31
    v_and_b32 v17, s101, v1
    v_lshlrev_b32 v17, 2, v17
    """)
    kv_poll(A, 16, 17, full=True)
    ts(A, 5)
    load_G(A, sCH, sLB)
    zero_pads(A, sLB, 20, 16)
    A(f"""
    s_mov_b32 s{sTASK}, 0
    s_mov_b32 s{sNTASK}, 1
    s_mov_b32 s{sGL}, 1
    s_cmp_ge_u32 s{sWV}, 4
    s_cbranch_scc1 L_conv
    s_add_u32 s84, s{sCH}, 4
    s_add_u32 s85, s{sLB}, {4*CONV_WSZ}
    """)
    load_G(A, 84, 85)
    zero_pads(A, 85, 20, 16)
    A(f"""
    s_mov_b32 s{sNTASK}, 2
    s_mov_b32 s{sGL}, {1+16+32}
    """)

def gemm2(A):
    A("L_g2_lentry:")
    g2_srds(A)
    A("s_branch L_g2_p2")
    A("L_g2_iss:")
    for sl in range(2):
        for l in issueW(sl): A(l)
    A("L_g2_p2:")
    A("s_waitcnt vmcnt(0)")
    A(f"""
    s_cmp_lt_u32 s{sWV}, 4
    s_cbranch_scc1 L_g2_nwl
    """)
    w_landed(A, 14, 15)
    A("L_g2_nwl:")
    for b in range(2):
        for l in wreads(b, b): A(l)
    A("L_g2_p3:")
    A("s_waitcnt lgkmcnt(0)")
    for sl in range(2):
        for l in issueW(sl): A(l)
    A(f"""
    s_cmp_eq_u32 s{sCW}, 0
    s_cbranch_scc1 L_g2_ncw
    """)
    lds_wait_min(A, 4, 0, 4, 208, sleep=False)
    A("L_g2_ncw:")
    for l in issueW(2): A(l)
    A(f"""
    s_lshr_b32 s96, s{sMT2}, 1
    s_lshl_b32 s96, s96, 8
    s_add_u32 s96, s96, {HF_OFF}
    v_lshlrev_b32 v14, 2, v1
    s_mov_b32 s{sZD}, 0
    s_waitcnt vmcnt(5)
    """)
    for l in wreads(0, 2): A(l)
    for l in wreads(1, 3): A(l)
    A(f"""
    s_cmp_eq_u32 s{sZP}, 0
    s_cbranch_scc1 L_g2_nzp
    """)
    flag_store(A, 15, f"s{sZP}")
    A(f"""
    L_g2_nzp:
    s_cmp_ge_u32 s{sWV}, 4
    s_cbranch_scc1 L_g2_nx
    v_add_u32 v{T2}, s{sTOK}, v2
    v_lshlrev_b32 v{T2+0}, 3, v{T2}
    buffer_load_dwordx2 v[{STR}:{STR+1}], v{T2}, {R(S4)}, 0 offen sc1
    """)
    for nb in range(5):
        A(f"buffer_load_dwordx2 v[{XR+2*nb}:{XR+2*nb+1}], v{XO}, {R(S0)}, 0 offen offset:{32*nb}")
    A(f"""
    L_g2_nx:
    buffer_load_dword v{VFL}, v14, {R(S7)}, s96 offen sc1
    s_waitcnt lgkmcnt(0)
    """)
    for sl in range(2):
        for l in issueW(sl): A(l)
    ts(A, 8)
    L, D_ = A.label("L_hp"), A.label("L_hpd")
    A(f"""
    s_mov_b32 s74, {SPIN}
    s_waitcnt vmcnt(10)
    {L}:
    v_cmp_ne_u32 vcc, s{sNON}, v{VFL}
    s_and_b64 vcc, vcc, s[{sMK}:{sMK+1}]
    s_cbranch_scc0 {D_}
    buffer_load_dword v{VFL}, v14, {R(S7)}, s96 offen sc1
    s_waitcnt vmcnt(0)
    s_sub_u32 s74, s74, 1
    s_cmp_lg_u32 s74, 0
    s_cbranch_scc1 {L}
    {D_}:
    v_add_u32 v{VFL}, {WS_[2]}, v{WA2}
    """)
    ts(A, 9)
    A(f"""
    s_cmp_lt_u32 s{sWV}, 4
    s_cbranch_scc1 L_g2_np
    s_setprio 1
    L_g2_np:
    """)
    q = []
    def hload(i, tb):
        L_ = []
        if i == NS2-1 and tb == 0:
            L_ += [f"s_cmp_eq_u32 s{sWV}, 2", f"s_cselect_b32 s{sHO}, 0x40000000, s{sHO}",
                   f"s_cmp_eq_u32 s{sWV}, 3", f"s_cselect_b32 s{sHO}, 0x40000000, s{sHO}"]
        hb = HB[i % 4] + 4*tb
        L_.append(f"s_add_u32 s101, s{sHO}, {tb*54*1024}")
        L_.append(f"buffer_load_dwordx4 v[{hb}:{hb+3}], v{L16}, {R(S3)}, s101 offen{SC}")
        if tb == 3: L_.append(f"s_add_u32 s{sHO}, s{sHO}, 4096")
        q.append((i, tb))
        return L_
    for i in range(4):
        for tb in range(4):
            for l in hload(i, tb): A(l)
    A(f"""
    s_lshr_b32 s96, s{sMT2}, 4
    s_mul_i32 s96, s96, 2560
    s_mul_i32 s97, s{sNT2}, 320
    s_add_u32 s96, s96, s97
    s_add_u32 s96, s96, {ZF_OFF}
    v_lshlrev_b32 v15, 3, v1
    s_cmp_ge_u32 s{sWV}, 4
    s_cbranch_scc1 L_g2_nzf
    buffer_load_dwordx2 v[{VZF}:{VZF+1}], v15, {R(S7)}, s96 offen sc1
    L_g2_nzf:
    """)
    def zload():
        A(f"""
        v_lshrrev_b32 v{T2}, 1, v1
        v_lshlrev_b32 v{T2}, 12, v{T2}
        v_and_b32 v14, 1, v1
        v_lshl_add_u32 v{T2}, v14, 4, v{T2}
        s_mul_i32 s100, s{sNT2}, {80*4096}
        s_lshl_b32 s101, s{sTOK}, 1
        s_add_u32 s100, s100, s101
        s_mul_i32 s101, s{sWV}, 2560
        s_add_u32 m0, s101, {ZT_L}
        """)
        for i in range(3):
            if i == 2: A("s_mov_b32 exec_hi, 0")
            A(f"buffer_load_dwordx4 v{T2}, {R(S5)}, s100 offen{SC} lds")
            if i == 2: A("s_mov_b32 exec_hi, -1")
            if i < 2:
                A(f"s_add_u32 m0, m0, 1024")
                A(f"s_add_u32 s100, s100, {32*4096}")
    def zcheck():
        A(f"""
        v_cmp_ne_u32 vcc, s{sNON}, v{VZF}
        v_cmp_ne_u32_e64 s[100:101], s{sNON}, v{VZF+1}
        s_or_b64 vcc, vcc, s[100:101]
        s_and_b32 vcc_hi, vcc_hi, 0xff
        s_cmp_eq_u64 vcc, 0
        """)
    for i in range(NS2):
        wf = BW + 20*(i % 4)
        fill = wreads([2, 0, 1][i-1], (i-1) % 4) if 1 <= i <= 3 else []
        fi = 0
        A("s_waitcnt lgkmcnt(0)")
        for tb in range(4):
            n = len(q) - 1 - q.index((i, tb))
            A(f"s_waitcnt vmcnt({n})")
            if i == 4 and tb == 1:
                A(f"""
                s_cmp_ge_u32 s{sWV}, 4
                s_cbranch_scc1 L_g2_nz
                """)
                zcheck()
                A("s_cbranch_scc0 L_g2_nz")
                zload()
                A(f"s_mov_b32 s{sZD}, 1")
                A("L_g2_nz:")
            hb = HB[i % 4] + 4*tb
            for nb in range(5):
                ac = ACC2 + (tb*5 + nb)*4
                src = "0" if i == 0 else f"v[{ac}:{ac+3}]"
                A(f"v_mfma_f32_16x16x32_bf16 v[{ac}:{ac+3}], v[{wf+4*nb}:{wf+4*nb+3}], v[{hb}:{hb+3}], {src}")
                if nb % 2 == 0 and fi < len(fill): A(fill[fi]); fi += 1
            if i + 4 < NS2:
                for l in hload(i + 4, tb): A(l)
        assert fi == len(fill)
    ts(A, 10)
    A(f"""
    v_add_u32 v14, s{sRB}, v{L16}
    v_add_u32 v{VFL}, {WS_[2]}, v14
    s_cmp_lt_u32 s{sWV}, 4
    s_cbranch_scc1 L_g2_c
    """)
    def piece(k):
        return (14, WS_[k]) if k < 2 else (VFL, 20480*(k-2))
    for b in range(20):
        ac = ACC2 + 4*b
        va, so = piece(b // 5)
        A(f"ds_write_b128 v{va}, v[{ac}:{ac+3}] offset:{so + 1024*(b % 5)}")
    A("s_waitcnt lgkmcnt(0)")
    A("s_barrier")
    ts_store(A, 14)
    A("s_branch L_end")
    A("L_g2_c:")
    OWN = 208
    for w in range(4):
        A(f"s_cmp_lg_u32 s{sWV}, {w}")
        A(f"s_cbranch_scc1 L_g2_red_{w}")
        for tb in range(4):
            if tb == w: continue
            sl = (tb - w - 1) & 3
            for nb in range(5):
                ac = ACC2 + (tb*5 + nb)*4
                va, so = piece(sl)
                A(f"ds_write_b128 v{va}, v[{ac}:{ac+3}] offset:{so + nb*1024}")
        for nb in range(5):
            ac = ACC2 + (w*5 + nb)*4
            for r in range(4): A(f"v_mov_b32 v{OWN+4*nb+r}, v{ac+r}")
        A(f"L_g2_red_{w}:")
    L, D_ = A.label("L_zp"), A.label("L_zpd")
    A(f"""
    s_cmp_lg_u32 s{sZD}, 0
    s_cbranch_scc1 L_g2_zd
    s_mov_b32 s74, {SPIN}
    {L}:
    buffer_load_dwordx2 v[{VZF}:{VZF+1}], v15, {R(S7)}, s96 offen sc1
    s_waitcnt vmcnt(0)
    """)
    zcheck()
    A(f"""
    s_cbranch_scc1 {D_}
    s_sub_u32 s74, s74, 1
    s_cmp_lg_u32 s74, 0
    s_cbranch_scc1 {L}
    {D_}:
    """)
    zload()
    A("L_g2_zd:")
    L, D_ = A.label("L_sp"), A.label("L_spd")
    A(f"""
    v_add_u32 v{T2}, s{sTOK}, v2
    v_lshlrev_b32 v{T2}, 3, v{T2}
    s_mov_b32 s74, {SPIN}
    {L}:
    v_cmp_ne_u32 vcc, s{sNON}, v{STR+1}
    s_cmp_eq_u64 vcc, 0
    s_cbranch_scc1 {D_}
    buffer_load_dwordx2 v[{STR}:{STR+1}], v{T2}, {R(S4)}, 0 offen sc1
    s_waitcnt vmcnt(0)
    s_sub_u32 s74, s74, 1
    s_cmp_lg_u32 s74, 0
    s_cbranch_scc1 {L}
    {D_}:
    v_and_b32 v{STR+1}, 0xffff0000, v{STR}
    v_lshlrev_b32 v{STR}, 16, v{STR}
    v_rcp_f32 v{STR+1}, v{STR+1}
    s_waitcnt vmcnt(0) lgkmcnt(0)
    s_barrier
    """)
    ts(A, 11)
    P = [ACC2 + 20*k for k in range(4)] + [BW + 20*k for k in range(3)]
    for sl in range(3):
        A(f"""
        s_sub_u32 s100, s{sWV}, {1+sl}
        s_and_b32 s100, s100, 3
        s_mul_i32 s100, s100, 5120
        s_add_u32 s100, s100, {WS_[sl]}
        v_add_u32 v{14 + (sl & 1)}, s100, v{L16}
        """)
        for nb in range(5):
            A(f"ds_read_b128 v[{P[sl]+4*nb}:{P[sl]+4*nb+3}], v{14 + (sl & 1)} offset:{nb*1024}")
    A(f"""
    s_mov_b32 s100, {WS_[0] + 20480}
    s_cmp_eq_u32 s{sWV}, 1
    s_cselect_b32 s100, {WS_[1] + 20480}, s100
    s_cmp_eq_u32 s{sWV}, 2
    s_cselect_b32 s100, {WS_[2] + 20480}, s100
    s_cmp_eq_u32 s{sWV}, 3
    s_cselect_b32 s100, {OVF0}, s100
    v_add_u32 v15, s100, v{L16}
    """)
    for lw in range(4):
        for nb in range(5):
            A(f"ds_read_b128 v[{P[3+lw]+4*nb}:{P[3+lw]+4*nb+3}], v15 offset:{lw*5120 + nb*1024}")
    ZR = 228
    for nb in range(5):
        A(f"ds_read_b64_tr_b16 v[{ZR+2*nb}:{ZR+2*nb+1}], v{ZA} offset:{512*nb}")
    for k in range(7):
        rem = (6-k)*5 + 5
        A(f"s_waitcnt lgkmcnt({min(rem, 15)})")
        for nb in range(5):
            for p in range(2):
                a = OWN + 4*nb + 2*p; b = P[k] + 4*nb + 2*p
                A(f"v_pk_add_f32 v[{a}:{a+1}], v[{a}:{a+1}], v[{b}:{b+1}]")
    A("s_waitcnt lgkmcnt(0)")
    T = 240
    for nb in range(5):
        for p in range(2):
            xr, zr = XR + 2*nb + p, ZR + 2*nb + p
            a = OWN + 4*nb + 2*p
            A(f"""
            v_lshlrev_b32 v{T}, 16, v{xr}
            v_and_b32 v{T+1}, 0xffff0000, v{xr}
            v_lshlrev_b32 v{T+2}, 16, v{zr}
            v_and_b32 v{T+3}, 0xffff0000, v{zr}
            v_add_f32 v{a}, v{a}, v{T}
            v_add_f32 v{a+1}, v{a+1}, v{T+1}
            v_sub_f32 v{T}, v{T}, v{STR}
            v_sub_f32 v{T+1}, v{T+1}, v{STR}
            v_mul_f32 v{T+2}, v{T+2}, v{STR+1}
            v_mul_f32 v{T+3}, v{T+3}, v{STR+1}
            v_fmac_f32 v{a}, v{T}, v{T+2}
            v_fmac_f32 v{a+1}, v{T+1}, v{T+3}
            v_cvt_pk_bf16_f32 v{xr}, v{a}, v{a+1}
            """)
        A(f"buffer_store_dwordx2 v[{XR+2*nb}:{XR+2*nb+1}], v{XO}, {R(S2)}, 0 offen offset:{32*nb}")
    ts(A, 12)
    ts_store(A, 14)

def gen(name="fused_kernel"):
    A = Asm()
    MAPX = f"""
    s_mov_b32 s{sMT}, s{sXCD}
    s_mov_b32 s{sNT}, s{sSLOT}
    s_and_b32 s96, s{sSLOT}, 3
    s_lshl_b32 s{sMT2}, s{sXCD}, 2
    s_add_u32 s{sMT2}, s{sMT2}, s96
    """ if 'M' in XP else ''
    A(f"""
    s_cmp_ge_u32 s2, 256
    s_cbranch_scc1 L_end
    s_load_dwordx16 s[48:63], s[0:1], 0
    s_load_dwordx8 s[64:71], s[0:1], 64
    s_load_dwordx2 s[72:73], s[0:1], 96
    v_lshrrev_b32 v2, 6, v0
    v_and_b32 v1, 63, v0
    v_readfirstlane_b32 s{sWV}, v2
    s_and_b32 s{sXCD}, s2, 7
    s_lshr_b32 s{sSLOT}, s2, 3
    s_lshr_b32 s96, s{sXCD}, 1             ; b
    s_mul_i32 s97, s96, 27
    s_add_u32 s97, s97, s{sSLOT}           ; idx
    s_lshr_b32 s{sNT}, s97, 2
    s_and_b32 s97, s97, 3
    s_and_b32 s98, s{sXCD}, 1
    s_lshl_b32 s98, s98, 2
    s_add_u32 s{sMT}, s97, s98
    s_lshl_b32 s{sMT2}, s{sMT}, 2
    s_add_u32 s{sMT2}, s{sMT2}, s96
    s_lshr_b32 s{sNT2}, s{sSLOT}, 2
    {MAPX}
    s_mov_b32 s{sNON}, 0
    s_mov_b32 s{sZP}, 0
    s_cmp_lt_u32 s{sSLOT}, {NCV}
    s_cselect_b32 s{sCW}, 1, 0
    v_and_b32 v2, 15, v1
    v_lshrrev_b32 v3, 4, v1
    """)
    if DBG: A(f"v_mov_b32 v{VTS}, 0")
    ts(A, 0)
    A("s_waitcnt lgkmcnt(0)")
    srd(A, S6, P_DBG, 256)
    srd(A, S7, P_WS, SZ_FL, FL_OFF)
    A(f"""
    s_cmp_ge_u32 s{sSLOT}, 27
    s_cbranch_scc1 L_prep
    s_cmp_lt_u32 s{sWV}, 4
    s_cbranch_scc1 L_g1c
    """)
    g1_loader(A)
    A("L_g1c:")
    g1_compute(A)
    A("L_prep:")
    prep(A)
    conv_task(A)
    gemm2(A)
    A("L_end:")
    return kernel_wrap(name, A.text(), vgpr=256)

if __name__ == "__main__":
    from build import HEAD, NAME
    out = sys.argv[1]
    DBG = len(sys.argv) > 2 and sys.argv[2] == "dbg"
    txt = HEAD + f"; @launch kernel=fused_kernel grid=(256,1,1) block=(512,1,1) lds={LDS_TOTAL}\n"
    txt += '.amdgcn_target "amdgcn-amd-amdhsa--gfx950"\n' + gen()
    open(out, "w").write(txt)
```

```python
S, D, F = 2048, 640, 1728
SZ_X = S*D*2
XN_OFF = 0
KR_OFF = SZ_X
SZ_KR = D*2*4096
ZT_OFF = KR_OFF + SZ_KR
SZ_ZT = D*4096
H_OFF = ZT_OFF + SZ_ZT
SZ_H = S*F*2
ST_OFF = H_OFF + SZ_H
SZ_ST = S*8
SZ_W1 = D*F*2
SZ_WD = F*D*2
SZ_SSM = D*S*2
FL_OFF = (ST_OFF + SZ_ST + 4095) // 4096 * 4096
SZ_FL = 16384
KVF_OFF = 0
HF_OFF = 4096
ZF_OFF = 8192
WF_OFF = 13312
WP_OFF = FL_OFF + SZ_FL
SZ_WP = 432*5120
SZ_WS = WP_OFF + SZ_WP
```

```python
import math, struct, sys, os
import asmlib
from asmlib import Asm, srd, kernel_wrap
from layout import *
from k_conv import FB, CONV_WSZ
G0 = 16656
G1 = G0 + 4640
assert G1 + 4096 + 512 <= CONV_WSZ

def f32bits(x): return struct.unpack("<I", struct.pack("<f", x))[0]

SB = [0, 98304, 49152]
OFF_BG, OFF_BU = 32768, 40960
LDS_TOTAL = 163840
CS_OFF = 163328
LF_OFF = CS_OFF - 64
ST_L = LF_OFF - 1024
A_AREA = 98304
PK_L = 147456
PC_L = 0
ZT_L = 61440
PL_L = 71680
NTD = 6
KRG = 64*4096 + 128
NCV = 25
NST = 10
NS2 = 7
NWR = 6
SPIN = 1 << 13
DONE = 1000
assert 6*CONV_WSZ <= ST_L and PL_L + 16*5120 <= ST_L and PK_L + 10240 <= ST_L

P_Q, P_K, P_V, P_SH, P_SSMK, P_SSMD, P_WG, P_WU, P_WD, P_OUT, P_DBG, P_WS = 48, 50, 52, 54, 56, 58, 62, 64, 66, 68, 70, 72
S0, S1, S2, S3, SW, S5, S6 = 8, 12, 16, 20, 24, 28, 40
sWV, sXCD, sSLOT, sNON = 3, 4, 5, 6
sMT, sNT, sMT2, sNT2 = 34, 35, 36, 37
sWM, sWN = 80, 81
sHA = 44
sTOK, sMK, sZD, sWO, sWFO = 87, 88, 90, 91, 92
sCH, sLB, sD, sHP, sPR, sTASK, sNTASK, sGL = 32, 33, 38, 39, 7, 96, 97, 98
sKVF = 82
sZP = 93
def R(d): return f"s[{d}:{d+3}]"

DBG = False
XP = os.environ.get('XP', '')
VTS = 127
def ts(A, i, op="s_memrealtime"):
    if DBG:
        A(f"""
        {op} s[76:77]
        s_waitcnt lgkmcnt(0)
        v_writelane_b32 v{VTS}, s76, {i}
        """)
def tc(A, i): ts(A, i, "s_memtime")
def ts_store(A, vt):
    if not DBG: return
    A("s_waitcnt vmcnt(0)")
    ts(A, 15)
    A(f"""
    s_add_u32 s76, s{P_WS}, {32 << 20}
    s_addc_u32 s77, s{P_WS+1}, 0
    s_mov_b32 s78, 0x100000
    s_mov_b32 s79, 0x00020000
    s_lshl_b32 s75, s2, 3
    s_add_u32 s75, s75, s{sWV}
    s_lshl_b32 s75, s75, 8
    v_lshlrev_b32 v{vt}, 2, v1
    buffer_store_dword v{VTS}, v{vt}, s[76:79], s75 offen
    """)

def nonce_issue(A, v):
    A(f"buffer_load_dword v{v}, off, {R(S6)}, 0 sc1")
def nonce_ensure(A, v):
    L, D_ = A.label("L_non"), A.label("L_nond")
    A(f"""
    s_cmp_lg_u32 s{sNON}, 0
    s_cbranch_scc1 {D_}
    s_mov_b32 s74, {SPIN}
    {L}:
    buffer_load_dword v{v}, off, {R(S6)}, 0 sc1
    s_waitcnt vmcnt(0)
    v_readfirstlane_b32 s{sNON}, v{v}
    s_sub_u32 s74, s74, 1
    s_cmp_eq_u32 s74, 0
    s_cbranch_scc1 {D_}
    s_cmp_eq_u32 s{sNON}, 0
    s_cbranch_scc1 {L}
    {D_}:
    """)
def flag_store(A, v, soff):
    A(f"""
    v_mov_b32 v{v}, s{sNON}
    s_mov_b64 exec, 1
    buffer_store_dword v{v}, off, {R(SW)}, {soff} sc1
    s_mov_b64 exec, -1
    """)
def lds_wait_done(A, t):
    L, D_ = A.label("L_xw"), A.label("L_xwd")
    A(f"""
    v_mov_b32 v{t+8}, {LF_OFF}
    s_mov_b32 s74, {SPIN*8}
    {L}:
    ds_read_b128 v[{t}:{t+3}], v{t+8}
    ds_read_b128 v[{t+4}:{t+7}], v{t+8} offset:16
    s_waitcnt lgkmcnt(0)
    v_min_u32 v{t}, v{t}, v{t+1}
    v_min3_u32 v{t}, v{t}, v{t+2}, v{t+3}
    v_min3_u32 v{t}, v{t}, v{t+4}, v{t+5}
    v_min3_u32 v{t}, v{t}, v{t+6}, v{t+7}
    v_readfirstlane_b32 s100, v{t}
    s_cmp_ge_u32 s100, {DONE}
    s_cbranch_scc1 {D_}
    s_sleep 1
    s_sub_u32 s74, s74, 1
    s_cmp_lg_u32 s74, 0
    s_cbranch_scc1 {L}
    {D_}:
    """)

L16, XO, ZA, VFL, VZF, STR, T2, VP = 112, 113, 114, 115, 116, 118, 120, 121
XR = 4
WR = 128
ACC2 = 16

def w_setup(A):
    A(f"""
    s_and_b32 s99, s{sWV}, 3
    s_add_u32 s74, s99, 28
    s_cmp_ge_u32 s{sWV}, 4
    s_cselect_b32 s74, s99, s74            ; kb0
    s_mul_i32 s{sWO}, s{sNT2}, 54
    s_add_u32 s{sWO}, s{sWO}, s74
    s_mul_i32 s{sWO}, s{sWO}, 5120
    s_add_u32 s{sWO}, s{sWO}, {WP_OFF}
    s_lshl_b32 s{sWFO}, s{sNT2}, 8
    s_add_u32 s{sWFO}, s{sWFO}, {FL_OFF + WF_OFF}
    """)
def wload(n, reg=None):
    nb = n % 5
    r = WR + 4*n if reg is None else reg
    L = []
    if nb < 4:
        L.append(f"buffer_load_dwordx4 v[{r}:{r+3}], v{L16}, {R(SW)}, s{sWO} offen offset:{1024*nb}")
    else:
        L.append(f"s_add_u32 s{sWO}, s{sWO}, 4096")
        L.append(f"buffer_load_dwordx4 v[{r}:{r+3}], v{L16}, {R(SW)}, s{sWO} offen")
        L.append(f"s_add_u32 s{sWO}, s{sWO}, {4*5120 - 4096}")
    return L

def g2_setup(A, t):
    A(f"""
    s_and_b32 s99, s{sWV}, 3               ; j
    s_add_u32 s74, s99, 28
    s_cmp_ge_u32 s{sWV}, 4
    s_cselect_b32 s74, s99, s74            ; kb0
    s_mov_b32 s{sMK}, 0x1111111
    s_mov_b32 s{sMK+1}, 0
    s_lshl_b64 s[{sMK}:{sMK+1}], s[{sMK}:{sMK+1}], s74
    s_and_b32 s{sMK+1}, s{sMK+1}, 0x3fffff
    s_mul_i32 s101, s{sMT2}, {4*54*1024}
    s_lshl_b32 s100, s74, 10
    s_add_u32 s101, s101, s100
    s_add_u32 s101, s101, {H_OFF}
    """)
    for a in range(4):
        A(f"""
        s_add_u32 s100, s99, {1+a}
        s_and_b32 s100, s100, 3                ; f = tb
        s_mul_i32 s74, s100, {54*1024}
        s_add_u32 s{sHA+a}, s101, s74
        s_mul_i32 s74, s100, {3*5120}
        s_add_u32 s74, s74, {PC_L + a*5120}
        s_lshl_b32 s100, s100, 2
        s_add_u32 s100, s100, s99
        s_mul_i32 s100, s100, 5120
        s_add_u32 s100, s100, {PL_L}
        s_cmp_ge_u32 s{sWV}, 4
        s_cselect_b32 s74, s100, s74
        v_lshl_add_u32 v{VP+a}, v1, 4, s74
        """)
    A(f"""
    s_lshl_b32 s{sTOK}, s{sMT2}, 6
    s_lshl_b32 s100, s99, 4
    s_add_u32 s{sTOK}, s{sTOK}, s100
    s_mul_i32 s100, s{sNT2}, 160
    v_lshlrev_b32 v{L16}, 4, v1
    v_add_u32 v{t}, s{sTOK}, v2
    v_mul_u32_u24 v{XO}, 1280, v{t}
    v_lshl_add_u32 v{XO}, v3, 3, v{XO}
    v_add_u32 v{XO}, s100, v{XO}
    v_lshrrev_b32 v{t}, 2, v2
    v_lshl_add_u32 v{t}, v3, 2, v{t}
    v_and_b32 v{t+1}, 3, v2
    v_lshlrev_b32 v{t+1}, 3, v{t+1}
    s_mul_i32 s101, s99, 2560
    s_add_u32 s101, s101, {ZT_L}
    v_lshl_add_u32 v{ZA}, v{t}, 5, v{t+1}
    v_add_u32 v{ZA}, s101, v{ZA}
    """)
def x_loads(A):
    A(f"""
    v_add_u32 v{T2}, s{sTOK}, v2
    v_lshlrev_b32 v{T2}, 3, v{T2}
    s_mov_b32 s100, {ST_OFF}
    buffer_load_dwordx2 v[{STR}:{STR+1}], v{T2}, {R(SW)}, s100 offen sc1
    """)
    for nb in range(5):
        A(f"buffer_load_dwordx2 v[{XR+2*nb}:{XR+2*nb+1}], v{XO}, {R(S0)}, 0 offen offset:{32*nb}")

def g1_compute(A):
    XA, WA, VN = 4, 8, 12
    FR, ACC = 16, 128
    srd(A, S0, P_Q, SZ_X)
    A(f"""
    s_lshl_b32 s100, s{sMT}, 8
    s_lshl_b32 s101, s{sNT}, 4
    s_add_u32 s100, s100, s101
    s_lshl_b32 s101, s{sWV}, 2
    s_add_u32 s100, s100, s101
    v_add_u32 v13, s100, v3                ; row
    v_lshlrev_b32 v14, 3, v13
    v_mul_u32_u24 v13, 1280, v13
    v_lshl_add_u32 v13, v2, 4, v13
    s_cmp_ge_u32 s{sNT}, 16
    s_cbranch_scc1 L_g1c_ns0
    """)
    for i in range(5):
        A(f"buffer_load_dwordx4 v[{16+4*i}:{19+4*i}], v13, {R(S0)}, 0 offen offset:{256*i}")
    A(f"""
    L_g1c_ns0:
    s_or_b32 s100, s2, s{sWV}
    s_cmp_lg_u32 s100, 0
    s_cbranch_scc1 L_g1c_np
    s_memrealtime s[100:101]
    s_waitcnt lgkmcnt(0)
    s_max_u32 s100, s100, 1
    v_mov_b32 v4, s100
    s_mov_b64 exec, 1
    buffer_store_dword v4, off, {R(S6)}, 0 sc1
    s_mov_b64 exec, -1
    L_g1c_np:
    """)
    srd(A, S2, P_OUT, SZ_X)
    A(f"""
    s_lshr_b32 s{sWM}, s{sWV}, 1
    s_and_b32 s{sWN}, s{sWV}, 1
    v_lshrrev_b32 v40, 1, v2               ; sw
    v_xor_b32 v40, v40, v3
    v_lshlrev_b32 v41, 7, v2
    s_lshl_b32 s100, s{sWM}, 14
    v_add_u32 v41, s100, v41
    v_lshl_add_u32 v{XA}, v40, 4, v41
    v_xor_b32 v40, 4, v40
    v_lshl_add_u32 v{XA+1}, v40, 4, v41
    v_add_u32 v{XA+2}, {SB[1]}, v{XA}
    v_add_u32 v{XA+3}, {SB[1]}, v{XA+1}
    v_lshrrev_b32 v40, 2, v2
    v_lshl_add_u32 v40, v3, 3, v40         ; k = 8kq + i/4
    v_and_b32 v41, 3, v2
    v_lshlrev_b32 v41, 3, v41
    s_lshl_b32 s100, s{sWN}, 6
    v_add_u32 v41, s100, v41
    v_bfe_u32 v42, v2, 3, 1
    v_lshlrev_b32 v42, 5, v42
    v_xor_b32 v41, v41, v42
    v_and_b32 v42, 1, v3
    v_lshlrev_b32 v42, 6, v42
    v_xor_b32 v41, v41, v42
    v_lshl_add_u32 v{WA}, v40, 7, v41
    v_add_u32 v{WA}, {OFF_BG}, v{WA}
    v_xor_b32 v{WA+1}, 32, v{WA}
    v_add_u32 v{WA+2}, {SB[1]}, v{WA}
    v_add_u32 v{WA+3}, {SB[1]}, v{WA+1}
    """)
    g2_setup(A, 40)
    w_setup(A)
    A(f"""
    s_cmp_ge_u32 s{sNT}, 16
    s_cbranch_scc1 L_g1c_ns1
    s_mov_b32 s99, 0x3f803f80
    v_mov_b32 v40, 0
    v_mov_b32 v41, 0
    v_mov_b32 v42, 0
    v_mov_b32 v43, 0
    s_waitcnt vmcnt(0)
    """)
    for i in range(20):
        A(f"v_dot2c_f32_bf16 v{40+(i & 1)}, s99, v{16+i}")
        A(f"v_dot2c_f32_bf16 v{42+(i & 1)}, v{16+i}, v{16+i}")
    A("s_nop 3")
    A("v_add_f32 v40, v40, v41")
    A("v_add_f32 v41, v42, v43")
    for sh in (8, 4, 2, 1):
        for e in range(2):
            A(f"v_add_f32_dpp v{40+e}, v{40+e}, v{40+e} row_ror:{sh} row_mask:0xf bank_mask:0xf")
    A(f"""
    v_mul_f32 v40, {1.0/640!r}, v40
    v_mul_f32 v41, {1.0/640!r}, v41
    v_fma_f32 v41, -v40, v40, v41
    v_max_f32 v41, 0, v41
    v_cvt_pk_bf16_f32 v41, v41, v41
    v_lshlrev_b32 v41, 16, v41
    v_add_f32 v41, 0x3727c5ac, v41
    v_cvt_pk_bf16_f32 v41, v41, v41
    v_lshlrev_b32 v41, 16, v41
    v_sqrt_f32 v41, v41
    s_nop 0
    v_cvt_pk_bf16_f32 v13, v40, v41
    L_g1c_ns1:
    """)
    def reads(st, ks, fs):
        slot = st % 3
        F = FR + 48*fs
        hi = 2 if slot == 1 else 0
        so = SB[2] if slot == 2 else 0
        L = []
        for f4 in range(4):
            gu, fb = f4 // 2, f4 % 2
            for jj in range(2):
                L.append(f"ds_read_b64_tr_b16 v[{F+4*f4+2*jj}:{F+4*f4+2*jj+1}], v{WA+hi+fb} offset:{so + gu*8192 + ks*4096 + jj*512}")
        X = [f"ds_read_b128 v[{F+16+4*tb}:{F+19+4*tb}], v{XA+hi+ks} offset:{so + 2048*tb}" for tb in range(8)]
        return L[:2] + X[:1] + L[2:] + X[1:]
    ts(A, 1)
    A("s_barrier")
    ts(A, 2)
    tc(A, 13)
    for l in reads(0, 0, 0): A(l)
    nonce_issue(A, VN)
    CSR, STG = 16, 32
    step = 0
    for st in range(NST):
        for ks in range(2):
            fs = step & 1
            F = FR + 48*fs
            last = (st == NST-1 and ks == 1)
            A("s_waitcnt lgkmcnt(0)")
            if ks == 1: A("s_barrier")
            if last:
                tc(A, 14)
                ts(A, 6)
                pre = f"""
                s_lshl_b32 s100, s{sWN}, 7
                v_lshlrev_b32 v13, 4, v3
                s_add_u32 s100, s100, {CS_OFF}
                v_add_u32 v13, s100, v13
                s_lshl_b32 s101, s{sWM}, 9
                v_lshlrev_b32 v14, 2, v2
                s_add_u32 s101, s101, {ST_L}
                v_add_u32 v14, s101, v14
                """
                nxt = [x.strip() for x in pre.strip().split("\n")]
                for tb in range(8):
                    nxt.append(f"ds_read_b32 v{STG+tb}, v14 offset:{64*tb}")
                for f4 in range(4):
                    nxt.append(f"ds_read_b128 v[{CSR+4*f4}:{CSR+4*f4+3}], v13 offset:{(f4//2)*256 + (f4 % 2)*64}")
                post = f"""
                s_lshl_b32 s100, s{sMT}, 8
                s_lshl_b32 s101, s{sWM}, 7
                s_add_u32 s100, s100, s101
                s_lshr_b32 s74, s100, 4
                s_mul_i32 s74, s74, 54
                s_lshl_b32 s101, s{sNT}, 1
                s_add_u32 s101, s101, s{sWN}           ; kb
                s_add_u32 s74, s74, s101
                s_lshl_b32 s74, s74, 10
                s_add_u32 s74, s74, {H_OFF}
                s_lshr_b32 s100, s100, 7               ; mhalf
                s_lshl_b32 s100, s100, 8
                s_lshl_b32 s101, s101, 2
                s_add_u32 s100, s100, s101
                s_add_u32 s{sZP}, s100, {FL_OFF + HF_OFF}
                """
                nxt += [x.strip() for x in post.strip().split("\n")]
            else:
                nxt = reads(st, 1, 1-fs) if ks == 0 else reads(st+1, 0, 1-fs)
            ri = 0
            for mi in range(32):
                tb, f4 = mi // 4, mi % 4
                ac = ACC + tb*16 + f4*4
                src = "0" if step == 0 else f"v[{ac}:{ac+3}]"
                A(f"v_mfma_f32_16x16x32_bf16 v[{ac}:{ac+3}], v[{F+4*f4}:{F+4*f4+3}], v[{F+16+4*tb}:{F+19+4*tb}], {src}")
                if last:
                    for _ in range(2 if mi < 4 or mi > 16 else 1):
                        if ri < len(nxt): A(nxt[ri]); ri += 1
                elif (mi % 3 != 2) and ri < len(nxt):
                    A(nxt[ri]); ri += 1
                if step == 3 and mi == 26:
                    A(f"""
                    s_waitcnt vmcnt(0)
                    v_readfirstlane_b32 s{sNON}, v{VN}
                    """)
                    nonce_ensure(A, VN)
                    A(f"""
                    s_cmp_ge_u32 s{sNT}, 16
                    s_cbranch_scc1 L_g1c_ns2
                    v_mov_b32 v12, v13
                    v_mov_b32 v13, s{sNON}
                    s_mov_b32 s100, {ST_OFF}
                    s_mov_b32 exec_lo, 0x00010001
                    s_mov_b32 exec_hi, 0x00010001
                    buffer_store_dwordx2 v[12:13], v14, {R(SW)}, s100 offen sc1
                    s_mov_b64 exec, -1
                    L_g1c_ns2:
                    """)
            while ri < len(nxt): A(nxt[ri]); ri += 1
            step += 1
    ts(A, 3)
    c1 = -2.0*math.log2(math.e)*math.sqrt(2.0/math.pi)
    c2 = c1*0.044715
    A(f"""
    s_setprio 2
    s_mov_b32 s96, {hex(f32bits(c1))}
    s_mov_b32 s97, {hex(f32bits(c2))}
    s_waitcnt lgkmcnt(0)
    """)
    K0 = 48
    T = 64
    wn = 0
    for tb in range(8):
        g = STG + tb
        kk = K0 + 8*(tb & 1)
        NM, C1, C2, S2_ = kk, kk+2, kk+4, kk+6
        A(f"""
        v_and_b32 v{kk+1}, 0xffff0000, v{g}        ; s
        v_lshlrev_b32 v{NM}, 16, v{g}              ; m
        v_rcp_f32 v{kk+3}, v{kk+1}
        v_mul_f32 v{S2_}, v{kk+1}, v{kk+1}
        v_xor_b32 v{NM}, 0x80000000, v{NM}
        v_mul_f32 v{C1}, s96, v{kk+3}
        v_mul_f32 v{kk+5}, v{kk+3}, v{kk+3}
        v_mul_f32 v{C2}, s97, v{kk+3}
        v_mul_f32 v{C2}, v{C2}, v{kk+5}
        """)
        ag, au = ACC + tb*16, ACC + tb*16 + 8
        TT = T + 8*(tb & 1)
        bc = "op_sel_hi:[1,0,1]"
        P = range(4)
        for p in P: A(f"v_pk_fma_f32 v[{ag+2*p}:{ag+2*p+1}], v[{CSR+2*p}:{CSR+2*p+1}], v[{NM}:{NM+1}], v[{ag+2*p}:{ag+2*p+1}] {bc}")
        for p in P: A(f"v_pk_mul_f32 v[{TT+2*p}:{TT+2*p+1}], v[{ag+2*p}:{ag+2*p+1}], v[{ag+2*p}:{ag+2*p+1}]")
        for p in P: A(f"v_pk_fma_f32 v[{TT+2*p}:{TT+2*p+1}], v[{TT+2*p}:{TT+2*p+1}], v[{C2}:{C2+1}], v[{C1}:{C1+1}] op_sel_hi:[1,0,0]")
        for p in P: A(f"v_pk_mul_f32 v[{TT+2*p}:{TT+2*p+1}], v[{TT+2*p}:{TT+2*p+1}], v[{ag+2*p}:{ag+2*p+1}]")
        for p in P:
            A(f"v_exp_f32 v{TT+2*p}, v{TT+2*p}")
            A(f"v_exp_f32 v{TT+2*p+1}, v{TT+2*p+1}")
            A(f"v_pk_fma_f32 v[{au+2*p}:{au+2*p+1}], v[{CSR+8+2*p}:{CSR+8+2*p+1}], v[{NM}:{NM+1}], v[{au+2*p}:{au+2*p+1}] {bc}")
        for p in P: A(f"v_pk_fma_f32 v[{TT+2*p}:{TT+2*p+1}], v[{TT+2*p}:{TT+2*p+1}], v[{S2_}:{S2_+1}], v[{S2_}:{S2_+1}] op_sel_hi:[1,0,0]")
        for p in P:
            A(f"v_rcp_f32 v{TT+2*p}, v{TT+2*p}")
            A(f"v_rcp_f32 v{TT+2*p+1}, v{TT+2*p+1}")
            A(f"v_pk_mul_f32 v[{au+2*p}:{au+2*p+1}], v[{au+2*p}:{au+2*p+1}], v[{ag+2*p}:{ag+2*p+1}]")
        for p in P: A(f"v_pk_mul_f32 v[{TT+2*p}:{TT+2*p+1}], v[{TT+2*p}:{TT+2*p+1}], v[{au+2*p}:{au+2*p+1}]")
        O = 80 + 4*(tb % 4)
        for p in P: A(f"v_cvt_pk_bf16_f32 v{O+p}, v{TT+2*p}, v{TT+2*p+1}")
        A(f"buffer_store_dwordx4 v[{O}:{O+3}], v{L16}, {R(SW)}, s74 offen sc1")
        if tb < 7: A(f"s_add_u32 s74, s74, {54*1024}")
        if tb == 0: x_loads(A)
        for _ in range(4):
            if wn < 5*NWR:
                for l in wload(wn): A(l)
                wn += 1
    assert wn == 5*NWR
    ts(A, 4)
    A("s_setprio 0")
    A("s_branch L_g2_go")

CV = dict(t0=4, t1=5, t2=6, fa=7, ga=8, ka=9, hl=10, hd=11, lf=12, xa=13, zw=14,
          fa0=113, ga0=114, ka0=115, hl0=116, zo=117, ho=118, zp0=119, hd2=252, l16=L16, acc=16, F=48, G=80)

def conv_order():
    o = [(7,0),(6,0),(6,1),(5,0),(5,1),(5,2),(4,0),(4,1),(4,2),(4,3)]
    o += [(0,4),(0,7),(1,4),(2,4),(3,4),(0,5),(1,5),(2,5),(0,6),(1,6)]
    o += [(p, c) for c in range(4) for p in range(4)]
    assert sorted(o) == sorted((p, c) for p in range(8) for c in range(8-p))
    for a, b in zip(o, o[1:] + o[:1]): assert sum(a) != sum(b), (a, b)
    return o

def conv_setup(A):
    V = CV
    t0, t1, t2 = V["t0"], V["t1"], V["t2"]
    A(f"""
    s_and_b32 s{sHP}, s{sWV}, 1
    s_lshl_b32 s100, s{sHP}, 8             ; 256*hp
    s_lshl_b32 s101, s{sHP}, 11            ; 2048*hp
    v_add_u32 v{t2}, 1, v2
    v_and_b32 v{V['fa0']}, 3, v{t2}        ; j
    v_lshrrev_b32 v{t2}, 2, v{t2}
    v_lshlrev_b32 v{t2}, 4, v{t2}
    v_cmp_ne_u32 vcc, 0, v{V['fa0']}
    v_mul_u32_u24 v{V['fa0']}, 4160, v{V['fa0']}
    v_add_u32 v{V['fa0']}, v{V['fa0']}, v{t2}
    v_cndmask_b32 v{t2}, 0, 16, vcc
    v_add_u32 v{V['fa0']}, v{V['fa0']}, v{t2}
    v_lshlrev_b32 v{t2}, 4, v3
    v_sub_u32 v{V['fa0']}, v{V['fa0']}, v{t2}
    v_add_u32 v{V['fa0']}, 48, v{V['fa0']}
    v_add_u32 v{V['fa0']}, s100, v{V['fa0']}
    v_and_b32 v{V['ga0']}, 1, v2
    v_cmp_eq_u32 vcc, 1, v{V['ga0']}
    v_lshrrev_b32 v{V['ga0']}, 1, v2
    v_lshlrev_b32 v{V['ga0']}, 6, v{V['ga0']}
    v_add_u32 v{V['ga0']}, v{V['ga0']}, v{t2}
    v_mov_b32 v{t2}, {G1+4080-3584}
    v_mov_b32 v{t0}, {G0+4080-3584}
    v_cndmask_b32 v{t2}, v{t2}, v{t0}, vcc
    v_sub_u32 v{V['ga0']}, v{t2}, v{V['ga0']}
    v_add_u32 v{V['ga0']}, s100, v{V['ga0']}
    v_lshlrev_b32 v{t2}, 7, v3
    v_lshl_add_u32 v{V['zo']}, v2, 2, v{t2}
    v_add_u32 v{V['zo']}, s101, v{V['zo']}
    v_sub_u32 v{V['ka0']}, {G0+4092-1600}, v{V['zo']}
    v_add_u32 v{V['zo']}, 8192, v{V['zo']}
    v_lshlrev_b32 v{V['l16']}, 4, v1
    s_lshl_b32 s100, s{sHP}, 1
    v_and_b32 v{t1}, 1, v3
    v_add_u32 v{t1}, s100, v{t1}
    v_add_u32 v{t2}, v2, v{t1}
    v_subrev_u32 v{t2}, 16, v{t2}
    v_lshlrev_b32 v{V['ho']}, 2, v{t2}
    v_cmp_gt_i32 vcc, 0, v{t2}
    v_mov_b32 v{t2}, 0x7fff0000
    v_cndmask_b32 v{V['ho']}, v{V['ho']}, v{t2}, vcc
    v_cmp_ne_u32 vcc, 0, v{t1}
    v_mul_u32_u24 v{V['hl0']}, 4160, v{t1}
    v_cndmask_b32 v{t2}, 0, 16, vcc
    v_add_u32 v{V['hl0']}, v{V['hl0']}, v{t2}
    v_lshl_add_u32 v{V['hl0']}, v2, 2, v{V['hl0']}
    v_cmp_gt_u32 vcc, 32, v1
    v_mov_b32 v{t2}, {G1+4096-512}
    v_mov_b32 v{t0}, {G0+4096}
    v_cndmask_b32 v{t2}, v{t2}, v{t0}, vcc
    v_add_u32 v{V['zp0']}, v{t2}, v{V['l16']}
    s_lshl_b32 s100, s{sPR}, 3
    s_add_u32 s100, s100, {LF_OFF}
    v_mov_b32 v{V['lf']}, s100
    """)

def load_F(A, ch, lb, hd):
    V = CV
    A(f"""
    s_lshl_b32 s100, s{ch}, 12
    buffer_load_dword v{hd}, v{V['ho']}, {R(S3)}, s100 offen
    s_lshl_b32 s101, s{sHP}, 3
    s_add_u32 s100, s100, s101
    s_mul_i32 s101, s{sHP}, 8336
    s_add_u32 s101, s101, s{lb}
    s_add_u32 m0, s101, 64
    """)
    for i in range(4):
        A(f"buffer_load_dwordx4 v{V['l16']}, {R(S3)}, s100 offen offset:{1024*i} lds")
    A(f"""
    s_lshl_b32 s74, s{sHP}, 4
    s_sub_u32 s101, s101, s74
    s_add_u32 m0, s101, {4176+64}
    s_add_u32 s100, s100, 4
    """)
    for i in range(4):
        A(f"buffer_load_dwordx4 v{V['l16']}, {R(S3)}, s100 offen offset:{1024*i} lds")
def load_G(A, ch, lb):
    V = CV
    A(f"""
    s_lshl_b32 s100, s{ch}, 12
    s_lshr_b32 s101, s{ch}, 6
    s_lshl_b32 s101, s101, 6
    s_add_u32 s101, s101, s{sHP}
    s_lshl_b32 s101, s101, 1
    s_add_u32 s100, s100, s101
    s_add_u32 s100, s100, {KR_OFF}
    s_mul_i32 s101, s{sHP}, {G1-G0}
    s_add_u32 s101, s101, s{lb}
    s_add_u32 m0, s101, {G0}
    """)
    for i in range(4):
        A(f"buffer_load_dwordx4 v{V['l16']}, {R(SW)}, s100 offen offset:{1024*i} lds")
def zero_pads(A, lb, z4, t):
    A(f"""
    v_add_u32 v{t}, s{lb}, v{CV['zp0']}
    v_mov_b32 v{z4}, 0
    v_mov_b32 v{z4+1}, 0
    v_mov_b32 v{z4+2}, 0
    v_mov_b32 v{z4+3}, 0
    ds_write_b128 v{t}, v[{z4}:{z4+3}]
    """)
def kv_poll(A, v, va):
    L, D_ = A.label("L_kvp"), A.label("L_kvd")
    A(f"""
    s_mov_b32 s74, {SPIN}
    {L}:
    buffer_load_dword v{v}, v{va}, {R(SW)}, s{sKVF} offen sc1
    s_waitcnt vmcnt(0)
    v_cmp_ne_u32 vcc, s{sNON}, v{v}
    s_cmp_eq_u32 vcc_lo, 0
    s_cbranch_scc1 {D_}
    s_sub_u32 s74, s74, 1
    s_cmp_lg_u32 s74, 0
    s_cbranch_scc1 {L}
    {D_}:
    """)

def pair_signal(A, k):
    V = CV
    A(f"""
    s_lshl_b32 s100, s{sTASK}, 2
    s_add_u32 s100, s100, {k}
    s_lshl_b32 s101, s{sHP}, 2
    v_mov_b32 v{V['t0']}, s100
    v_add_u32 v{V['t1']}, s101, v{V['lf']}
    ds_write_b32 v{V['t1']}, v{V['t0']}
    """)
def pair_wait(A, k):
    V = CV
    L, D_ = A.label("L_pw"), A.label("L_pwd")
    A(f"""
    s_lshl_b32 s100, s{sTASK}, 2
    s_add_u32 s100, s100, {k}
    s_lshl_b32 s101, s{sHP}, 2
    s_xor_b32 s101, s101, 4
    v_add_u32 v{V['t1']}, s101, v{V['lf']}
    s_mov_b32 s99, {SPIN*8}
    {L}:
    ds_read_b32 v{V['t0']}, v{V['t1']}
    s_waitcnt lgkmcnt(0)
    v_readfirstlane_b32 s101, v{V['t0']}
    s_cmp_ge_u32 s101, s100
    s_cbranch_scc1 {D_}
    s_sub_u32 s99, s99, 1
    s_cmp_lg_u32 s99, 0
    s_cbranch_scc1 {L}
    {D_}:
    """)

def conv_task(A):
    V = CV
    ACC, Fb, Gb = V["acc"], V["F"], V["G"]
    A("L_conv:")
    A(f"""
    s_lshr_b32 s100, s{sCH}, 1
    s_lshl_b32 s100, s100, 2
    s_load_dword s{sD}, s[{P_SSMD}:{P_SSMD+1}], s100
    v_add_u32 v{V['fa']}, s{sLB}, v{V['fa0']}
    v_add_u32 v{V['ga']}, s{sLB}, v{V['ga0']}
    v_add_u32 v{V['ka']}, s{sLB}, v{V['ka0']}
    v_add_u32 v{V['hl']}, s{sLB}, v{V['hl0']}
    v_add_u32 v{V['xa']}, s{sLB}, v{V['l16']}
    v_add_u32 v{V['zw']}, s{sLB}, v{V['zo']}
    s_bitcmp0_b32 s{sGL}, 0
    s_cbranch_scc1 L_conv_nw
    s_bitcmp1_b32 s{sGL}, 3
    s_cbranch_scc1 L_conv_w30
    s_waitcnt vmcnt(0)
    L_conv_w30:
    s_waitcnt vmcnt({5*NWR})
    ds_write_b32 v{V['hl']}, v{V['hd']}
    s_bitcmp0_b32 s{sGL}, 4
    s_cbranch_scc1 L_conv_nh
    v_add_u32 v{V['t0']}, {4*CONV_WSZ}, v{V['hl']}
    ds_write_b32 v{V['t0']}, v{V['hd2']}
    L_conv_nh:
    s_cmp_eq_u32 s{sHP}, 0
    s_cbranch_scc1 L_conv_nw
    s_add_u32 s100, s{sLB}, {G1+4094}
    v_mov_b32 v{V['t0']}, s100
    v_mov_b32 v{V['t1']}, 0
    s_mov_b64 exec, 1
    ds_write_b16 v{V['t0']}, v{V['t1']}
    s_bitcmp0_b32 s{sGL}, 4
    s_cbranch_scc1 L_conv_nf2
    v_add_u32 v{V['t0']}, {4*CONV_WSZ}, v{V['t0']}
    ds_write_b16 v{V['t0']}, v{V['t1']}
    L_conv_nf2:
    s_mov_b64 exec, -1
    L_conv_nw:
    s_waitcnt lgkmcnt(0)
    s_bitcmp1_b32 s{sCH}, 0
    s_cbranch_scc1 L_conv_odd
    s_lshl_b32 s{sD}, s{sD}, 16
    L_conv_odd:
    s_and_b32 s{sD}, s{sD}, 0xffff0000
    """)
    pair_signal(A, 1)
    pair_wait(A, 1)
    ts(A, 6)
    order = conv_order()
    def rd(kind, i, r):
        if kind == "F":
            reg = Fb + 4*i
            return f"ds_read_b128 v[{reg}:{reg+3}], v{V['fa']} offset:{512*i + 64*r}"
        reg = Gb + 4*i
        return f"ds_read_b128 v[{reg}:{reg+3}], v{V['ga']} offset:{3584 - 512*i + 64*r}"
    q = []
    first = []
    for p, c in order:
        for t in (("F", p), ("G", c)):
            if t not in first: first.append(t)
    for kind, i in first:
        A(rd(kind, i, 0)); q.append((kind, i, 0))
    lastuse = {}
    for k, (p, c) in enumerate(order):
        lastuse[("F", p)] = k; lastuse[("G", c)] = k
    NR = 4
    ob = Fb + 24
    done = -1
    for r in range(NR):
        seen = set()
        for k, (p, c) in enumerate(order):
            qq = p + c
            need = max(q.index(("F", p, r)), q.index(("G", c, r)))
            if need > done:
                n = len(q) - 1 - need
                A(f"s_waitcnt lgkmcnt({min(n, 15)})")
                done = need if n <= 15 else len(q) - 1 - 15
                assert done >= need
            src = "0" if (r == 0 and qq not in seen) else f"v[{ACC+4*qq}:{ACC+4*qq+3}]"
            seen.add(qq)
            A(f"v_mfma_f32_16x16x32_bf16 v[{ACC+4*qq}:{ACC+4*qq+3}], v[{Gb+4*c}:{Gb+4*c+3}], v[{Fb+4*p}:{Fb+4*p+3}], {src}")
            if r < NR-1:
                for kind, i in (("G", c), ("F", p)):
                    if lastuse[(kind, i)] == k:
                        A(rd(kind, i, r+1)); q.append((kind, i, r+1))
            elif 3 <= k < 11:
                j = k - 3
                A(f"ds_read_b32 v{ob + j}, v{V['ka']} offset:{1600 - 512*(j//2) - 64*(j % 2)}"); q.append(("kv", j))
            if k == 22 and r == NR-1:
                A("s_waitcnt lgkmcnt(0)"); done = len(q) - 1
                pair_signal(A, 2); q.append(("sig", 2))
            if k == 30 and r == 1:
                A(f"""
                s_cmp_eq_u32 s{sTASK}, 0
                s_cbranch_scc1 L_conv_npf
                s_waitcnt vmcnt(0)
                """)
                flag_store(A, V['t0'], f"s{sZD}")
                A("L_conv_npf:")
    pair_wait(A, 2)
    A(f"""
    s_cmp_eq_u32 s{sHP}, 0
    s_cbranch_scc1 L_conv_x0
    """)
    for q_ in range(4): A(f"ds_write_b128 v{V['xa']}, v[{ACC+4*q_}:{ACC+4*q_+3}] offset:{4096 + 1024*q_}")
    for i in range(16): A(f"v_mov_b32 v{ACC+i}, v{ACC+16+i}")
    A(f"s_branch L_conv_x1")
    A("L_conv_x0:")
    for q_ in range(4): A(f"ds_write_b128 v{V['xa']}, v[{ACC+16+4*q_}:{ACC+16+4*q_+3}] offset:{1024*q_}")
    A("L_conv_x1:")
    A("s_waitcnt lgkmcnt(0)")
    pair_signal(A, 3)
    pair_wait(A, 3)
    A(f"""
    s_xor_b32 s100, s{sHP}, 1
    s_lshl_b32 s100, s100, 12
    v_add_u32 v{V['t2']}, s100, v{V['xa']}
    """)
    for q_ in range(4): A(f"ds_read_b128 v[{ACC+16+4*q_}:{ACC+16+4*q_+3}], v{V['t2']} offset:{1024*q_}")
    t0, t1 = V["t2"], V["hd"]
    for q_ in range(4):
        A(f"s_waitcnt lgkmcnt({3-q_})" if q_ == 0 else f"s_waitcnt lgkmcnt({3-q_+2*q_})")
        for hh in range(2):
            kvr = ob + 2*q_ + hh
            a0 = ACC + 4*q_ + 2*hh
            A(f"""
            v_and_b32 v{V['t0']}, 0xffff0000, v{kvr}
            v_lshlrev_b32 v{t1}, 16, v{kvr}
            v_add_f32 v{a0}, v{a0}, v{a0+16}
            v_add_f32 v{a0+1}, v{a0+1}, v{a0+17}
            v_fmac_f32 v{a0}, s{sD}, v{V['t0']}
            v_fmac_f32 v{a0+1}, s{sD}, v{t1}
            v_cvt_pk_bf16_f32 v{kvr}, v{a0}, v{a0+1}
            ds_write_b32 v{V['zw']}, v{kvr} offset:{512*q_ + 64*hh}
            """)
    A(f"""
    s_lshl_b32 s100, s{sHP}, 11
    s_lshl_b32 s74, s{sCH}, 12
    s_add_u32 s74, s74, s100
    s_add_u32 s74, s74, {ZT_OFF}
    s_add_u32 s100, s100, 8192
    v_add_u32 v{t0}, s100, v{V['xa']}
    s_waitcnt lgkmcnt(0)
    ds_read_b128 v[{ACC}:{ACC+3}], v{t0}
    ds_read_b128 v[{ACC+4}:{ACC+7}], v{t0} offset:1024
    s_mul_i32 s100, s{sHP}, 2560
    s_lshl_b32 s101, s{sCH}, 2
    s_add_u32 s100, s100, s101
    s_add_u32 s{sZD}, s100, {FL_OFF + ZF_OFF}
    s_waitcnt lgkmcnt(0)
    buffer_store_dwordx4 v[{ACC}:{ACC+3}], v{V['l16']}, {R(SW)}, s74 offen sc1
    buffer_store_dwordx4 v[{ACC+4}:{ACC+7}], v{V['l16']}, {R(SW)}, s74 offen offset:1024 sc1
    """)
    ts(A, 7)
    A(f"""
    s_add_u32 s100, s{sTASK}, 1
    s_cmp_ge_u32 s100, s{sNTASK}
    s_cbranch_scc1 L_conv_done
    s_mov_b32 s{sTASK}, s100
    s_add_u32 s{sCH}, s{sCH}, 4
    s_add_u32 s{sLB}, s{sLB}, {4*CONV_WSZ}
    s_mov_b32 s{sGL}, 0
    s_branch L_conv
    L_conv_done:
    s_lshl_b32 s101, s{sHP}, 2
    v_mov_b32 v{V['t0']}, {DONE}
    v_add_u32 v{V['t1']}, s101, v{V['lf']}
    ds_write_b32 v{V['t1']}, v{V['t0']}
    s_mov_b32 s{sZP}, s{sZD}
    L_g2_lentry:
    """)
    srd(A, S0, P_Q, SZ_X)
    srd(A, S2, P_OUT, SZ_X)
    g2_setup(A, 16)
    A(f"""
    s_cmp_ge_u32 s{sWV}, 4
    s_cbranch_scc1 L_g2_go
    """)
    x_loads(A)
    lds_wait_done(A, 16)

def g1_loader(A):
    VA, VB, CA, CSA, ONE, TMP, VN = 16, 24, 26, 32, 40, 48, 15
    VKF, VL4, VST, VSO, VWF, WVP, WAP, PKR = 64, 65, 66, 68, 69, 70, 75, 80
    srd(A, S0, P_Q, SZ_X)
    srd(A, S1, P_WG, SZ_W1)
    srd(A, S2, P_WU, SZ_W1)
    A(f"""
    s_sub_u32 s96, s{sWV}, 4               ; lw
    v_lshrrev_b32 v4, 3, v1                ; l/8
    v_and_b32 v5, 7, v1                    ; l%8
    s_lshl_b32 s101, s96, 4
    v_add_u32 v6, s101, v4                 ; k row
    v_mul_u32_u24 v6, 3456, v6
    v_and_b32 v7, 1, v3
    v_lshlrev_b32 v7, 1, v7
    v_xor_b32 v7, v7, v5
    v_xor_b32 v8, 4, v7
    s_lshl_b32 s101, s{sNT}, 7
    v_add_u32 v6, s101, v6
    v_lshl_add_u32 v{VB}, v7, 4, v6
    v_lshl_add_u32 v{VB+1}, v8, 4, v6
    v_add_u32 v{VB+1}, {8*3456 - 1024}, v{VB+1}
    s_lshl_b32 s32, s96, 13                ; lw*8192
    s_lshl_b32 s33, s96, 11                ; lw*2048
    s_lshl_b32 s100, s{sMT}, 8
    s_lshl_b32 s101, s96, 6
    s_add_u32 s83, s100, s101
    v_add_u32 v6, s83, v4
    v_mul_u32_u24 v6, 1280, v6
    v_xor_b32 v7, v5, v3
    v_xor_b32 v8, 4, v7
    v_lshl_add_u32 v7, v7, 4, v6
    v_lshl_add_u32 v8, v8, 4, v6
    """)
    for i in range(8):
        A(f"v_add_u32 v{VA+i}, {10240*i - 1024*(i % 4)}, v{7 + (i & 1)}")
    q = []
    def issue(st):
        sb = SB[st % 3]
        A(f"s_mov_b32 s100, {st*128}")
        A(f"s_mov_b32 s101, {st*64*3456}")
        A(f"s_add_u32 m0, s33, {sb + OFF_BG}")
        for i in range(2): A(f"buffer_load_dwordx4 v{VB+i}, {R(S1)}, s101 offen offset:{1024*i} lds")
        A(f"s_add_u32 m0, s33, {sb + OFF_BU}")
        for i in range(2): A(f"buffer_load_dwordx4 v{VB+i}, {R(S2)}, s101 offen offset:{1024*i} lds")
        for hh in range(2):
            A(f"s_add_u32 m0, s32, {sb + hh*4096}")
            for i in range(4): A(f"buffer_load_dwordx4 v{VA+4*hh+i}, {R(S0)}, s100 offen offset:{1024*i} lds")
        q.extend([("st", st)]*12)
    def after(tag, pk=False):
        i0 = max(i for i, x in enumerate(q) if x == tag)
        return sum(1 for x in q[i0+1:] if pk or x != ("pk",))
    def wait_for(tag):
        n, npk = after(tag), after(tag, True)
        if n != npk:
            L = A.label("L_wpk")
            A(f"s_waitcnt vmcnt({npk})")
            A("s_cmp_lt_u32 s96, 2")
            A(f"s_cbranch_scc1 {L}")
            A(f"s_waitcnt vmcnt({n})")
            A(f"{L}:")
        else:
            A(f"s_waitcnt vmcnt({n})")
    issue(0)
    srd(A, S5, P_WD, SZ_WD)
    A(f"""
    s_cmp_ge_u32 s96, 2
    s_cbranch_scc1 L_g1l_npk
    s_mul_i32 s84, s{sXCD}, 27
    s_add_u32 s84, s84, s{sSLOT}
    s_lshl_b32 s84, s84, 1
    s_add_u32 s84, s84, s96                ; id
    s_mul_i32 s85, s84, 1214
    s_lshr_b32 s85, s85, 16                ; n2p
    s_mul_i32 s86, s85, 54
    s_sub_u32 s86, s84, s86                ; kbp
    s_mul_i32 s100, s85, 160
    """)
    assert all((i*1214) >> 16 == i // 54 for i in range(432))
    for i in range(5):
        A(f"""
        v_add_u32 v4, {64*i}, v1
        v_mul_u32_u24 v5, 205, v4
        v_lshrrev_b32 v5, 11, v5
        v_mul_u32_u24 v6, 10, v5
        v_sub_u32 v6, v4, v6
        v_mul_u32_u24 v7, 1280, v5
        v_lshl_add_u32 v7, v6, 4, v7
        v_add_u32 v7, s100, v7
        v_subrev_u32 v{WVP+i}, {1024*(i % 4)}, v7
        """)
    A(f"""
    s_mul_i32 s100, s86, 40960
    s_mul_i32 s101, s96, 5120
    s_add_u32 m0, s101, {PK_L}
    """)
    for i in range(4):
        A(f"buffer_load_dwordx4 v{WVP+i}, {R(S5)}, s100 offen offset:{1024*i} lds")
    A(f"s_add_u32 m0, s101, {PK_L + 4096}")
    A(f"buffer_load_dwordx4 v{WVP+4}, {R(S5)}, s100 offen lds")
    A(f"""
    v_lshrrev_b32 v4, 2, v2
    v_lshl_add_u32 v4, v3, 2, v4
    v_and_b32 v5, 3, v2
    v_lshlrev_b32 v5, 3, v5
    v_mul_u32_u24 v{WAP}, 160, v4
    s_add_u32 s101, s101, {PK_L}
    v_add3_u32 v{WAP}, v{WAP}, v5, s101
    s_lshl_b32 s85, s85, 8
    s_lshl_b32 s86, s86, 2
    s_add_u32 s85, s85, s86
    s_add_u32 s85, s85, {FL_OFF + WF_OFF}
    s_mul_i32 s84, s84, 5120
    s_add_u32 s84, s84, {WP_OFF}
    L_g1l_npk:
    """)
    q.extend([("pk",)]*5)
    issue(1); issue(2)
    A(f"""
    s_cmp_lg_u32 s{sWV}, 4
    s_cbranch_scc1 L_g1l_np
    s_cmp_lt_u32 s{sSLOT}, {NCV}
    s_cselect_b32 s100, 0, {DONE}
    v_mov_b32 v4, {LF_OFF}
    v_mov_b32 v8, s100
    v_mov_b32 v9, s100
    v_mov_b32 v10, s100
    v_mov_b32 v11, s100
    ds_write_b128 v4, v[8:11]
    v_mov_b32 v8, {DONE}
    v_mov_b32 v9, {DONE}
    v_mov_b32 v10, {DONE}
    v_mov_b32 v11, {DONE}
    ds_write_b128 v4, v[8:11] offset:16
    L_g1l_np:
    v_lshrrev_b32 v4, 2, v2
    v_lshl_add_u32 v4, v3, 3, v4           ; k
    v_and_b32 v5, 3, v2
    v_lshlrev_b32 v5, 3, v5
    s_lshr_b32 s100, s96, 1
    s_lshl_b32 s100, s100, 6
    v_add_u32 v5, s100, v5
    v_bfe_u32 v6, v2, 3, 1
    v_lshlrev_b32 v6, 5, v6
    v_xor_b32 v5, v5, v6
    v_and_b32 v6, 1, v3
    v_lshlrev_b32 v6, 6, v6
    v_xor_b32 v5, v5, v6
    v_lshl_add_u32 v{CA}, v4, 7, v5
    s_and_b32 s100, s96, 1
    s_lshl_b32 s100, s100, 13
    s_add_u32 s100, s100, {OFF_BG}
    v_add_u32 v{CA}, s100, v{CA}
    v_xor_b32 v{CA+1}, 32, v{CA}
    v_add_u32 v{CA+2}, {SB[1]}, v{CA}
    v_add_u32 v{CA+3}, {SB[1]}, v{CA+1}
    v_lshlrev_b32 v{VL4}, 2, v1
    s_bfe_u32 s{sPR}, s{sWV}, 0x10001
    """)
    for i in range(4): A(f"v_mov_b32 v{ONE+i}, 0x3f803f80")
    conv_setup(A)
    w_setup(A)
    srd(A, S3, P_SSMK, SZ_SSM)
    def colsum(st):
        slot = st % 3
        hi = 2 if slot == 1 else 0
        so = SB[2] if slot == 2 else 0
        n = 0
        for ks in range(2):
            for fb in range(2):
                for jj in range(2):
                    A(f"ds_read_b64_tr_b16 v[{TMP+2*n}:{TMP+2*n+1}], v{CA+hi+fb} offset:{so + ks*4096 + jj*512}")
                    n += 1
        for n in range(4):
            fb = n % 2
            A(f"s_waitcnt lgkmcnt({6-2*n})")
            src = "0" if (st == 0 and n < 2) else f"v[{CSA+4*fb}:{CSA+4*fb+3}]"
            A(f"v_mfma_f32_16x16x32_bf16 v[{CSA+4*fb}:{CSA+4*fb+3}], v[{TMP+4*n}:{TMP+4*n+3}], v[{ONE}:{ONE+3}], {src}")
    A(f"""
    s_mul_i32 s100, s{sXCD}, {NCV}
    s_add_u32 s100, s100, s{sSLOT}
    s_lshl_b32 s100, s100, 1
    s_add_u32 s100, s100, {40*NTD}
    s_add_u32 s95, s100, s{sPR}            ; channel (s95)
    s_lshr_b32 s101, s100, 6
    s_lshl_b32 s{sKVF}, s101, 7
    s_add_u32 s{sKVF}, s{sKVF}, {FL_OFF + KVF_OFF}
    s_mul_i32 s94, s{sPR}, {CONV_WSZ}
    s_add_u32 s94, s94, {A_AREA}           ; area (s94)
    s_mov_b32 s{sGL}, 1
    v_add_u32 v{VSO}, s83, v1
    v_lshlrev_b32 v{VSO}, 3, v{VSO}
    """)
    wait_for(("st", 0))
    ts(A, 1)
    A("s_barrier")
    WSCHED = {6: 10, 7: 12, 8: 8}
    wn = 0
    def wl(n):
        nonlocal wn
        for _ in range(n):
            for l in wload(wn): A(l)
            wn += 1; q.append(("w",))
    for st in range(NST):
        if st == 8:
            A(f"""
            s_cmp_ge_u32 s{sSLOT}, {NCV}
            s_cbranch_scc1 L_g1l_c8n
            """)
            load_F(A, 95, 94, CV['hd'])
            zero_pads(A, 94, 76, 49)
            colsum(8)
            n9 = after(("vkf",))
            A(f"""
            s_waitcnt vmcnt({n9 + 9})
            v_cmp_ne_u32 vcc, s{sNON}, v{VKF}
            s_cmp_lg_u32 vcc_lo, 0
            s_cbranch_scc1 L_g1l_c8d
            """)
            load_G(A, 95, 94)
            A(f"s_mov_b32 s{sGL}, 3")
            A("s_branch L_g1l_c8d")
            A("L_g1l_c8n:")
            colsum(8)
            A(f"s_waitcnt vmcnt({n9})")
            A("L_g1l_c8d:")
            A("s_barrier")
            wl(WSCHED[8])
            continue
        colsum(st)
        if st < NST-1:
            wait_for(("st", st+1))
            if st == 0:
                A(f"""
                s_cmp_ge_u32 s96, 2
                s_cbranch_scc1 L_g1l_npk1
                """)
                for nb in range(5):
                    for jj in range(2):
                        A(f"ds_read_b64_tr_b16 v[{PKR+4*nb+2*jj}:{PKR+4*nb+2*jj+1}], v{WAP} offset:{jj*2560 + nb*32}")
                A("L_g1l_npk1:")
            if st == 2:
                A(f"v_readfirstlane_b32 s{sNON}, v{VN}")
            if st == 6:
                L, D_ = A.label("L_wf"), A.label("L_wfd")
                A(f"""
                s_mov_b32 s74, {SPIN}
                {L}:
                v_cmp_ne_u32 vcc, s{sNON}, v{VWF}
                s_and_b32 vcc_hi, vcc_hi, 0x3fffff
                s_cmp_eq_u64 vcc, 0
                s_cbranch_scc1 {D_}
                buffer_load_dword v{VWF}, v{VL4}, {R(SW)}, s{sWFO} offen sc1
                s_waitcnt vmcnt(0)
                s_sub_u32 s74, s74, 1
                s_cmp_lg_u32 s74, 0
                s_cbranch_scc1 {L}
                {D_}:
                """)
            A("s_barrier")
            if st == 0:
                nonce_issue(A, VN); q.append(("non",))
                A(f"""
                s_cmp_ge_u32 s96, 2
                s_cbranch_scc1 L_g1l_npk2
                s_waitcnt lgkmcnt(0)
                """)
                for nb in range(4):
                    A(f"buffer_store_dwordx4 v[{PKR+4*nb}:{PKR+4*nb+3}], v{L16}, {R(SW)}, s84 offen offset:{1024*nb} sc1")
                A("s_add_u32 s84, s84, 4096")
                A(f"buffer_store_dwordx4 v[{PKR+16}:{PKR+19}], v{L16}, {R(SW)}, s84 offen sc1")
                A("L_g1l_npk2:")
                q.extend([("pk",)]*5)
            if st == 2:
                nonce_ensure(A, VN)
                A(f"""
                s_cmp_ge_u32 s96, 2
                s_cbranch_scc1 L_g1l_npk3
                """)
                flag_store(A, 4, "s85")
                A("L_g1l_npk3:")
                q.append(("pk",))
            if st == 4:
                A(f"buffer_load_dword v{VWF}, v{VL4}, {R(SW)}, s{sWFO} offen sc1"); q.append(("vwf",))
            if st + 3 < NST: issue(st + 3)
            if st == 6:
                A(f"s_mov_b32 s100, {ST_OFF}")
                A(f"buffer_load_dwordx2 v[{VST}:{VST+1}], v{VSO}, {R(SW)}, s100 offen sc1"); q.append(("vst",))
                A(f"buffer_load_dword v{VKF}, v{VL4}, {R(SW)}, s{sKVF} offen sc1"); q.append(("vkf",))
            if st in WSCHED: wl(WSCHED[st])
    assert wn == 5*NWR
    L, D_ = A.label("L_stc"), A.label("L_stok")
    A(f"""
    s_mov_b32 s74, {SPIN}
    s_mov_b32 s100, {ST_OFF}
    {L}:
    v_cmp_ne_u32 vcc, s{sNON}, v{VST+1}
    s_cmp_eq_u64 vcc, 0
    s_cbranch_scc1 {D_}
    buffer_load_dwordx2 v[{VST}:{VST+1}], v{VSO}, {R(SW)}, s100 offen sc1
    s_waitcnt vmcnt(0)
    s_sub_u32 s74, s74, 1
    s_cmp_lg_u32 s74, 0
    s_cbranch_scc1 {L}
    {D_}:
    s_lshl_b32 s101, s96, 8
    s_add_u32 s101, s101, {ST_L}
    v_add_u32 v49, s101, v{VL4}
    ds_write_b32 v49, v{VST}
    s_lshr_b32 s101, s96, 1
    s_lshl_b32 s101, s101, 7
    s_and_b32 s100, s96, 1
    s_lshl_b32 s100, s100, 8
    s_add_u32 s100, s100, s101
    s_add_u32 s100, s100, {CS_OFF}
    v_lshlrev_b32 v49, 4, v3
    v_add_u32 v49, s100, v49
    s_mov_b32 exec_lo, 0x00010001
    s_mov_b32 exec_hi, 0x00010001
    ds_write_b128 v49, v[{CSA}:{CSA+3}]
    ds_write_b128 v49, v[{CSA+4}:{CSA+7}] offset:64
    s_mov_b64 exec, -1
    s_waitcnt lgkmcnt(0)
    s_barrier
    """)
    ts(A, 3)
    A(f"""
    s_cmp_ge_u32 s{sSLOT}, {NCV}
    s_cbranch_scc1 L_g2_lentry
    s_cmp_lg_u32 s{sGL}, 1
    s_mov_b32 s{sGL}, 1
    s_cbranch_scc1 L_g1l_gd
    """)
    kv_poll(A, VKF, VL4)
    load_G(A, 95, 94)
    A(f"""
    L_g1l_gd:
    s_mov_b32 s{sCH}, s95
    s_mov_b32 s{sLB}, s94
    s_mov_b32 s{sTASK}, 0
    s_mov_b32 s{sNTASK}, 1
    s_branch L_conv
    """)

def prep(A):
    KR, VR, KV, VF, TP, KF, OUT, SK = 16, 64, 96, 120, 128, 160, 192, 192
    B0 = 13
    VN = 124
    SO, SWa, SRa, SC_ = 248, 249, 250, 251
    V = CV
    A(f"""
    s_cmp_lg_u32 s{sWV}, 6
    s_cbranch_scc1 L_pr_nz
    v_mov_b32 v4, {LF_OFF}
    v_mov_b32 v{KV}, 0
    v_mov_b32 v{KV+1}, 0
    v_mov_b32 v{KV+2}, 0
    v_mov_b32 v{KV+3}, 0
    ds_write_b128 v4, v[{KV}:{KV+3}]
    ds_write_b128 v4, v[{KV}:{KV+3}] offset:16
    s_waitcnt lgkmcnt(0)
    L_pr_nz:
    s_barrier
    """)
    srd(A, S0, P_K, SZ_X)
    srd(A, S1, P_V, SZ_X)
    srd(A, S2, P_SH, 640*8)
    srd(A, S3, P_SSMK, SZ_SSM)
    A(f"""
    s_mul_i32 s96, s{sXCD}, 5
    s_add_u32 s96, s96, s{sSLOT}
    s_sub_u32 s86, s96, 27                 ; p
    s_mul_i32 s97, s86, 52
    s_lshr_b32 s97, s97, 8                 ; te = p/5
    s_mul_i32 s98, s97, 5
    s_sub_u32 s95, s86, s98                ; p%5
    s_cmp_ge_u32 s{sWV}, 4
    s_cselect_b32 s98, 5, 0
    s_add_u32 s98, s98, s95
    s_and_b32 s100, s{sWV}, 3
    s_lshl_b32 s96, s97, 2
    s_add_u32 s96, s96, s100
    s_lshl_b32 s99, s96, 6                 ; T0
    s_sub_u32 s100, s99, 4
    s_mul_i32 s100, s100, 1280
    s_lshl_b32 s101, s98, 7
    s_add_u32 s100, s100, s101
    v_lshrrev_b32 v8, 3, v1                ; tg
    v_and_b32 v9, 7, v1                    ; cg
    v_mul_u32_u24 v{B0}, 10240, v8
    v_lshl_add_u32 v{B0}, v9, 4, v{B0}
    v_add_u32 v{B0}, s100, v{B0}
    v_add_u32 v{B0+1}, 5120, v{B0}
    v_add_u32 v{B0+2}, 10240, v{B0}
    s_lshl_b32 s87, s98, 9
    v_lshlrev_b32 v10, 6, v9
    """)
    for i in range(4):
        A(f"buffer_load_dwordx4 v[{SK+4*i}:{SK+4*i+3}], v10, {R(S2)}, s87 offen offset:{16*i}")
    def ldk(r): A(f"buffer_load_dwordx4 v[{KR+4*r}:{KR+4*r+3}], v{B0+r//4}, {R(S0)}, 0 offen offset:{(r % 4)*1280}")
    def ldv(i):
        r = i + 4
        A(f"buffer_load_dwordx4 v[{VR+4*i}:{VR+4*i+3}], v{B0+r//4}, {R(S1)}, 0 offen offset:{(r % 4)*1280}")
    for r in range(1, 4): ldk(r)
    for i in range(8): ldk(i+4); ldv(i)
    nonce_issue(A, VN)
    ts(A, 16)
    A(f"""
    s_mul_i32 s86, s86, {NTD}              ; ch0
    s_lshr_b32 s{sPR}, s{sWV}, 1
    s_add_u32 s{sCH}, s86, s{sPR}
    s_mul_i32 s{sLB}, s{sPR}, {CONV_WSZ}
    """)
    conv_setup(A)
    A(f"""
    v_lshlrev_b32 v{SO}, 12, v8
    v_lshl_add_u32 v{SO}, v9, 4, v{SO}
    s_mul_i32 s83, s98, {KRG}
    s_sub_u32 s100, 1984, s99
    s_lshl_b32 s100, s100, 1
    s_add_u32 s83, s83, s100
    s_add_u32 s83, s83, {KR_OFF}
    s_lshl_b32 s100, s98, 7
    s_lshl_b32 s101, s96, 2
    s_add_u32 s100, s100, s101
    s_add_u32 s95, s100, {FL_OFF + KVF_OFF}
    v_sub_u32 v10, 7, v8
    v_xor_b32 v10, v10, v9
    v_lshlrev_b32 v10, 4, v10
    v_lshlrev_b32 v{SC_}, 4, v9
    s_mul_i32 s100, s{sHP}, {G1-G0}
    s_add_u32 s100, s100, s{sLB}
    s_add_u32 s100, s100, {G0}
    s_cmp_ge_u32 s{sWV}, 4
    s_cbranch_scc1 L_pr_l0
    v_lshl_add_u32 v{SWa}, v9, 10, v10
    v_lshrrev_b32 v{SRa}, 2, v9
    v_mul_u32_u24 v{SRa}, {4*CONV_WSZ - 4096}, v{SRa}
    v_add3_u32 v{SWa}, s100, v{SWa}, v{SRa}
    v_lshlrev_b32 v{SRa}, 7, v8
    v_add_u32 v{SRa}, s100, v{SRa}
    s_branch L_pr_l1
    L_pr_l0:
    v_lshl_add_u32 v{SWa}, v9, 9, v10
    v_add_u32 v{SWa}, s100, v{SWa}
    v_lshrrev_b32 v10, 2, v8               ; (l>>5)
    v_bfe_u32 v{SRa}, v1, 3, 2
    v_lshlrev_b32 v{SRa}, 7, v{SRa}
    v_lshl_add_u32 v{SRa}, v10, 9, v{SRa}
    v_add_u32 v{SRa}, s100, v{SRa}
    v_lshlrev_b32 v10, 4, v10
    v_xor_b32 v{SC_}, v{SC_}, v10          ; col ^ (l>>5)
    v_lshrrev_b32 v10, 5, v1
    v_bfe_u32 v{SO}, v1, 3, 2
    v_lshl_add_u32 v{SO}, v10, 3, v{SO}
    v_lshlrev_b32 v{SO}, 12, v{SO}
    v_lshl_add_u32 v{SO}, v9, 4, v{SO}
    L_pr_l1:
    s_waitcnt vmcnt({19 + 1})
    """)
    for cp in range(4):
        for j in range(4):
            for e in range(2):
                src = SK + 2*(2*cp + e) + j//2
                d = TP + 8*cp + 2*j + e
                if j % 2 == 0: A(f"v_lshlrev_b32 v{d}, 16, v{src}")
                else: A(f"v_and_b32 v{d}, 0xffff0000, v{src}")
    ts(A, 17)
    def unpk(r):
        for cp in range(4):
            d = KF + 8*(r % 4) + 2*cp
            A(f"v_lshlrev_b32 v{d}, 16, v{KR+4*r+cp}")
            A(f"v_and_b32 v{d+1}, 0xffff0000, v{KR+4*r+cp}")
    pr = lambda b: f"v[{b}:{b+1}]"
    A(f"s_waitcnt vmcnt({16 + 1})")
    ts(A, 1)
    for r in range(1, 4): unpk(r)
    for i in range(8):
        A(f"s_waitcnt vmcnt({1 + 2*(7-i) + 1})")
        unpk(i+4)
        cur = KV + 8*(i & 1); prv = KV + 8*(1 - (i & 1))
        kf = lambda r, cp: pr(KF + 8*(r % 4) + 2*cp)
        for cp in range(4): A(f"v_pk_mul_f32 {pr(cur+2*cp)}, {kf(i+1, cp)}, {pr(TP+8*cp+6)}")
        for j in (2, 1, 0):
            for cp in range(4): A(f"v_pk_fma_f32 {pr(cur+2*cp)}, {kf(i+4-j, cp)}, {pr(TP+8*cp+2*j)}, {pr(cur+2*cp)}")
        A(f"s_waitcnt vmcnt({1 + 2*(7-i)})")
        for cp in range(4):
            vf = VF + 2*(cp & 1)
            A(f"v_lshlrev_b32 v{vf}, 16, v{VR+4*i+cp}")
            A(f"v_and_b32 v{vf+1}, 0xffff0000, v{VR+4*i+cp}")
            A(f"v_pk_mul_f32 {pr(cur+2*cp)}, {pr(cur+2*cp)}, v[{vf}:{vf+1}]")
        if i % 2 == 1:
            j = (7-i)//2
            for c in range(8):
                A(f"v_cvt_pk_bf16_f32 v{OUT + 4*c + j}, v{cur+c}, v{prv+c}")
        if i in (0, 3, 6, 7): ts(A, 18 + (0, 3, 6, 7).index(i))
    A(f"""
    s_cmp_ge_u32 s{sWV}, 4
    s_cbranch_scc1 L_pr_l2
    """)
    RD = 64
    for c in range(8): A(f"ds_write_b128 v{SWa}, v[{OUT+4*c}:{OUT+4*c+3}] offset:{128*c}")
    for sx in range(8):
        if sx == 4: A(f"v_add_u32 v{SRa}, {4*CONV_WSZ}, v{SRa}")
        A(f"v_xor_b32 v{16+sx}, {16*sx}, v{SC_}")
        A(f"v_add_u32 v{16+sx}, v{16+sx}, v{SRa}")
    A("s_waitcnt lgkmcnt(0)")
    for sx in range(8):
        A(f"ds_read_b128 v[{RD+4*sx}:{RD+4*sx+3}], v{16+sx} offset:{1024*(sx % 4)}")
    for sx in range(8):
        A(f"s_waitcnt lgkmcnt({7-sx})")
        A(f"buffer_store_dwordx4 v[{RD+4*sx}:{RD+4*sx+3}], v{SO}, {R(SW)}, s83 offen sc1")
        if sx < 7: A("s_add_u32 s83, s83, 32768")
    A(f"""
    s_add_u32 s84, s{sCH}, 4
    s_add_u32 s85, s{sLB}, {4*CONV_WSZ}
    """)
    load_F(A, sCH, sLB, V['hd'])
    load_F(A, 84, 85, V['hd2'])
    A("s_waitcnt vmcnt(18)")
    A("s_branch L_pr_l3")
    A("L_pr_l2:")
    for sx in range(4):
        A(f"v_xor_b32 v{16+sx}, {32*sx}, v{SC_}")
        A(f"v_add_u32 v{16+sx}, v{16+sx}, v{SRa}")
    for ps in range(2):
        for c in range(4): A(f"ds_write_b128 v{SWa}, v[{OUT+16*ps+4*c}:{OUT+16*ps+4*c+3}] offset:{128*c}")
        A("s_waitcnt lgkmcnt(0)")
        for sx in range(4):
            A(f"ds_read_b128 v[{RD+16*ps+4*sx}:{RD+16*ps+4*sx+3}], v{16+sx} offset:{1024*sx}")
        for sx in range(4):
            A(f"s_waitcnt lgkmcnt({3-sx})")
            A(f"s_add_u32 s100, s83, {65536*sx + 16384*ps}")
            A(f"buffer_store_dwordx4 v[{RD+16*ps+4*sx}:{RD+16*ps+4*sx+3}], v{SO}, {R(SW)}, s100 offen sc1")
    load_F(A, sCH, sLB, V['hd'])
    A("s_waitcnt vmcnt(9)")
    A("L_pr_l3:")
    w_setup(A)
    ts(A, 2)
    A(f"v_readfirstlane_b32 s{sNON}, v{VN}")
    nonce_ensure(A, VN)
    flag_store(A, 16, "s95")
    ts(A, 3)
    L, D_ = A.label("L_kvp"), A.label("L_kvd")
    A(f"""
    s_lshr_b32 s100, s86, 6
    s_add_u32 s101, s86, {NTD-1}
    s_lshr_b32 s101, s101, 6
    s_sub_u32 s101, s101, s100
    s_lshl_b32 s{sKVF}, s100, 7
    s_add_u32 s{sKVF}, s{sKVF}, {FL_OFF + KVF_OFF}
    s_lshl_b32 s101, s101, 5
    s_add_u32 s101, s101, 31
    v_and_b32 v17, s101, v1
    v_lshlrev_b32 v17, 2, v17
    v_lshlrev_b32 v19, 2, v1
    """)
    zero_pads(A, sLB, 20, 16)
    A(f"""
    s_mov_b32 s74, {SPIN}
    {L}:
    buffer_load_dword v16, v17, {R(SW)}, s{sKVF} offen sc1
    buffer_load_dword v18, v19, {R(SW)}, s{sWFO} offen sc1
    s_waitcnt vmcnt(0)
    v_cmp_ne_u32 vcc, s{sNON}, v18
    s_and_b32 vcc_hi, vcc_hi, 0x3fffff
    v_cmp_ne_u32_e64 s[100:101], s{sNON}, v16
    s_or_b64 vcc, vcc, s[100:101]
    s_cbranch_scc0 {D_}
    s_sub_u32 s74, s74, 1
    s_cmp_lg_u32 s74, 0
    s_cbranch_scc1 {L}
    {D_}:
    """)
    ts(A, 5)
    load_G(A, sCH, sLB)
    A(f"""
    s_mov_b32 s{sTASK}, 0
    s_mov_b32 s{sNTASK}, 1
    s_mov_b32 s{sGL}, {1+8}
    s_cmp_ge_u32 s{sWV}, 4
    s_cbranch_scc1 L_pr_w
    """)
    load_G(A, 84, 85)
    zero_pads(A, 85, 20, 16)
    A(f"""
    s_mov_b32 s{sNTASK}, 2
    s_mov_b32 s{sGL}, {1+8+16}
    L_pr_w:
    """)
    for n in range(5*NWR):
        for l in wload(n): A(l)

def gemm2(A):
    A("L_g2_go:")
    L, D_ = A.label("L_hp"), A.label("L_hpd")
    A(f"""
    s_lshr_b32 s96, s{sMT2}, 1
    s_lshl_b32 s96, s96, 8
    s_add_u32 s96, s96, {FL_OFF + HF_OFF}
    v_lshlrev_b32 v14, 2, v1
    s_mov_b32 s{sZD}, 0
    s_waitcnt vmcnt(0)
    s_cmp_eq_u32 s{sZP}, 0
    s_cbranch_scc1 L_g2_nzp
    """)
    flag_store(A, 15, f"s{sZP}")
    A("L_g2_nzp:")
    ts(A, 8)
    A(f"""
    s_mov_b32 s74, {SPIN}
    {L}:
    buffer_load_dword v{VFL}, v14, {R(SW)}, s96 offen sc1
    s_waitcnt vmcnt(0)
    v_cmp_ne_u32 vcc, s{sNON}, v{VFL}
    s_and_b64 vcc, vcc, s[{sMK}:{sMK+1}]
    s_cbranch_scc0 {D_}
    s_sub_u32 s74, s74, 1
    s_cmp_lg_u32 s74, 0
    s_cbranch_scc1 {L}
    {D_}:
    """)
    ts(A, 9)
    free = [96, 100, 104, 108, 248, 252]
    todo = [("h", i, a) for i in range(NS2-1) for a in range(4)] + [("w", nb) for nb in range(5)] + [("h", NS2-1, a) for a in range(4)]
    todo.insert(todo.index(("h", 5, 0)), ("zf",))
    A(f"""
    s_lshr_b32 s96, s{sMT2}, 4
    s_mul_i32 s96, s96, 2560
    s_mul_i32 s97, s{sNT2}, 320
    s_add_u32 s96, s96, s97
    s_add_u32 s96, s96, {FL_OFF + ZF_OFF}
    v_lshlrev_b32 v15, 3, v1
    """)
    q = []; loc = {}
    MAXF = 16
    state = dict(done=-1)
    def pump(maxn=99):
        n = 0
        while todo and free and n < maxn and len(q) - 1 - state['done'] < MAXF:
            if todo[0] == ("zf",):
                q.append(todo.pop(0))
                A(f"buffer_load_dwordx2 v[{VZF}:{VZF+1}], v15, {R(SW)}, s96 offen sc1")
                continue
            t = todo.pop(0); r = free.pop(0); loc[t] = r; q.append(t); n += 1
            if t == ("w", 0):
                A(f"""
                s_and_b32 s100, s{sWV}, 6
                s_cmp_eq_u32 s100, 2
                s_cselect_b32 s{sWO}, 0x40000000, s{sWO}
                s_cselect_b32 s{sHA}, 0x40000000, s{sHA}
                s_cselect_b32 s{sHA+1}, 0x40000000, s{sHA+1}
                s_cselect_b32 s{sHA+2}, 0x40000000, s{sHA+2}
                s_cselect_b32 s{sHA+3}, 0x40000000, s{sHA+3}
                """)
            if t[0] == "h":
                a = t[2]
                A(f"buffer_load_dwordx4 v[{r}:{r+3}], v{L16}, {R(SW)}, s{sHA+a} offen")
                if t[1] < NS2-1: A(f"s_add_u32 s{sHA+a}, s{sHA+a}, 4096")
            else:
                for l in wload(t[1], r): A(l)
    pump()
    def zload():
        A(f"""
        v_lshrrev_b32 v{T2}, 1, v1
        v_lshlrev_b32 v{T2}, 12, v{T2}
        v_and_b32 v14, 1, v1
        v_lshl_add_u32 v{T2}, v14, 4, v{T2}
        s_mul_i32 s100, s{sNT2}, {80*4096}
        s_lshl_b32 s101, s{sTOK}, 1
        s_add_u32 s100, s100, s101
        s_add_u32 s100, s100, {ZT_OFF}
        s_mul_i32 s101, s{sWV}, 2560
        s_add_u32 m0, s101, {ZT_L}
        """)
        for i in range(3):
            if i == 2: A("s_mov_b32 exec_hi, 0")
            A(f"buffer_load_dwordx4 v{T2}, {R(SW)}, s100 offen lds")
            if i == 2: A("s_mov_b32 exec_hi, -1")
            if i < 2:
                A(f"s_add_u32 m0, m0, 1024")
                A(f"s_add_u32 s100, s100, {32*4096}")
    def zcheck():
        A(f"""
        v_cmp_ne_u32 vcc, s{sNON}, v{VZF}
        v_cmp_ne_u32_e64 s[100:101], s{sNON}, v{VZF+1}
        s_or_b64 vcc, vcc, s[100:101]
        s_and_b32 vcc_hi, vcc_hi, 0xff
        s_cmp_eq_u64 vcc, 0
        """)
    def pwrite(a):
        for nb in range(5):
            ac = ACC2 + (a*5 + nb)*4
            A(f"ds_write_b128 v{VP+a}, v[{ac}:{ac+3}] offset:{nb*1024}")
    for i in range(NS2):
        for a in range(4):
            need = [("h", i, a)] + ([("w", nb) for nb in range(5)] if i == NS2-1 else [])
            ni = max(q.index(t) for t in need)
            if ni > state['done']:
                A(f"s_waitcnt vmcnt({len(q) - 1 - ni})"); state['done'] = ni
            if i == 5 and a == 0:
                assert ni >= q.index(("zf",))
                A(f"""
                s_cmp_ge_u32 s{sWV}, 4
                s_cbranch_scc1 L_g2_nz
                """)
                zcheck()
                A("s_cbranch_scc0 L_g2_nz")
                zload()
                A(f"s_mov_b32 s{sZD}, 1")
                A("L_g2_nz:")
            if i == NS2-1 and a == 0:
                A(f"""
                s_cmp_lt_u32 s{sWV}, 4
                s_cbranch_scc1 L_g2_ncw
                """)
                lds_wait_done(A, 4)
                A("L_g2_ncw:")
            hb = loc[("h", i, a)]
            for nb in range(5):
                ac = ACC2 + (a*5 + nb)*4
                wf = WR + 20*i + 4*nb if i < NWR else loc[("w", nb)]
                src = "0" if i == 0 else f"v[{ac}:{ac+3}]"
                A(f"v_mfma_f32_16x16x32_bf16 v[{ac}:{ac+3}], v[{wf}:{wf+3}], v[{hb}:{hb+3}], {src}")
                if a == 3 and i < NWR:
                    free.append(wf); pump(1)
            free.append(hb); pump(1)
            if i == NS2-1 and a >= 1: pwrite(a-1)
    assert not todo
    ts(A, 10)
    A(f"""
    s_cmp_lt_u32 s{sWV}, 4
    s_cbranch_scc1 L_g2_c
    """)
    pwrite(3)
    A("s_waitcnt lgkmcnt(0)")
    A("s_barrier")
    ts_store(A, 14)
    A("s_branch L_end")
    A("L_g2_c:")
    OWN = ACC2 + 60
    L, D_ = A.label("L_zp"), A.label("L_zpd")
    A(f"""
    s_cmp_lg_u32 s{sZD}, 0
    s_cbranch_scc1 L_g2_zd
    s_mov_b32 s74, {SPIN}
    {L}:
    buffer_load_dwordx2 v[{VZF}:{VZF+1}], v15, {R(SW)}, s96 offen sc1
    s_waitcnt vmcnt(0)
    """)
    zcheck()
    A(f"""
    s_cbranch_scc1 {D_}
    s_sub_u32 s74, s74, 1
    s_cmp_lg_u32 s74, 0
    s_cbranch_scc1 {L}
    {D_}:
    """)
    zload()
    A("L_g2_zd:")
    L, D_ = A.label("L_sp"), A.label("L_spd")
    A(f"""
    v_add_u32 v{T2}, s{sTOK}, v2
    v_lshlrev_b32 v{T2}, 3, v{T2}
    s_mov_b32 s74, {SPIN}
    s_mov_b32 s100, {ST_OFF}
    {L}:
    v_cmp_ne_u32 vcc, s{sNON}, v{STR+1}
    s_cmp_eq_u64 vcc, 0
    s_cbranch_scc1 {D_}
    buffer_load_dwordx2 v[{STR}:{STR+1}], v{T2}, {R(SW)}, s100 offen sc1
    s_waitcnt vmcnt(0)
    s_sub_u32 s74, s74, 1
    s_cmp_lg_u32 s74, 0
    s_cbranch_scc1 {L}
    {D_}:
    v_and_b32 v{STR+1}, 0xffff0000, v{STR}
    v_lshlrev_b32 v{STR}, 16, v{STR}
    v_rcp_f32 v{STR+1}, v{STR+1}
    s_mul_i32 s100, s{sWV}, {3*5120}
    s_add_u32 s100, s100, {PC_L}
    v_add_u32 v14, s100, v{L16}
    s_mul_i32 s100, s{sWV}, {4*5120}
    s_add_u32 s100, s100, {PL_L}
    v_add_u32 v15, s100, v{L16}
    s_waitcnt vmcnt(0) lgkmcnt(0)
    s_barrier
    """)
    ts(A, 11)
    P = [128 + 20*k for k in range(6)] + [ACC2]
    for k in range(7):
        for nb in range(5):
            va, so = (14, k*5120) if k < 3 else (15, (k-3)*5120)
            A(f"ds_read_b128 v[{P[k]+4*nb}:{P[k]+4*nb+3}], v{va} offset:{so + nb*1024}")
    ZR = 40
    for nb in range(5):
        A(f"ds_read_b64_tr_b16 v[{ZR+2*nb}:{ZR+2*nb+1}], v{ZA} offset:{512*nb}")
    for k in range(7):
        rem = (6-k)*5 + 5
        A(f"s_waitcnt lgkmcnt({min(rem, 15)})")
        for nb in range(5):
            for p in range(2):
                a = OWN + 4*nb + 2*p; b = P[k] + 4*nb + 2*p
                A(f"v_pk_add_f32 v[{a}:{a+1}], v[{a}:{a+1}], v[{b}:{b+1}]")
    A("s_waitcnt lgkmcnt(0)")
    T = 52
    for nb in range(5):
        for p in range(2):
            xr, zr = XR + 2*nb + p, ZR + 2*nb + p
            a = OWN + 4*nb + 2*p
            A(f"""
            v_lshlrev_b32 v{T}, 16, v{xr}
            v_and_b32 v{T+1}, 0xffff0000, v{xr}
            v_lshlrev_b32 v{T+2}, 16, v{zr}
            v_and_b32 v{T+3}, 0xffff0000, v{zr}
            v_add_f32 v{a}, v{a}, v{T}
            v_add_f32 v{a+1}, v{a+1}, v{T+1}
            v_sub_f32 v{T}, v{T}, v{STR}
            v_sub_f32 v{T+1}, v{T+1}, v{STR}
            v_mul_f32 v{T+2}, v{T+2}, v{STR+1}
            v_mul_f32 v{T+3}, v{T+3}, v{STR+1}
            v_fmac_f32 v{a}, v{T}, v{T+2}
            v_fmac_f32 v{a+1}, v{T+1}, v{T+3}
            v_cvt_pk_bf16_f32 v{xr}, v{a}, v{a+1}
            """)
        A(f"buffer_store_dwordx2 v[{XR+2*nb}:{XR+2*nb+1}], v{XO}, {R(S2)}, 0 offen offset:{32*nb}")
    ts(A, 12)
    ts_store(A, 14)

def gen(name="fused_kernel"):
    A = Asm()
    A(f"""
    s_cmp_ge_u32 s2, 256
    s_cbranch_scc1 L_end
    s_load_dwordx16 s[48:63], s[0:1], 0
    s_load_dwordx8 s[64:71], s[0:1], 64
    s_load_dwordx2 s[72:73], s[0:1], 96
    v_lshrrev_b32 v2, 6, v0
    v_and_b32 v1, 63, v0
    v_readfirstlane_b32 s{sWV}, v2
    s_and_b32 s{sXCD}, s2, 7
    s_lshr_b32 s{sSLOT}, s2, 3
    s_lshr_b32 s96, s{sXCD}, 1             ; b
    s_mul_i32 s97, s96, 27
    s_add_u32 s97, s97, s{sSLOT}           ; idx
    s_lshr_b32 s{sNT}, s97, 2
    s_and_b32 s97, s97, 3
    s_and_b32 s98, s{sXCD}, 1
    s_lshl_b32 s98, s98, 2
    s_add_u32 s{sMT}, s97, s98
    s_lshl_b32 s{sMT2}, s{sMT}, 2
    s_add_u32 s{sMT2}, s{sMT2}, s96
    s_lshr_b32 s{sNT2}, s{sSLOT}, 2
    s_mov_b32 s{sNON}, 0
    s_mov_b32 s{sZP}, 0
    v_and_b32 v2, 15, v1
    v_lshrrev_b32 v3, 4, v1
    """)
    if DBG: A(f"v_mov_b32 v{VTS}, 0")
    ts(A, 0)
    A("s_waitcnt lgkmcnt(0)")
    srd(A, S6, P_DBG, 256)
    srd(A, SW, P_WS, SZ_WS)
    A(f"""
    s_cmp_ge_u32 s{sSLOT}, 27
    s_cbranch_scc1 L_prep
    s_cmp_lt_u32 s{sWV}, 4
    s_cbranch_scc1 L_g1c
    """)
    g1_loader(A)
    A("L_g1c:")
    g1_compute(A)
    A("L_prep:")
    prep(A)
    conv_task(A)
    gemm2(A)
    A("L_end:")
    return kernel_wrap(name, A.text(), vgpr=256)

if __name__ == "__main__":
    from build import HEAD, NAME
    out = sys.argv[1]
    DBG = len(sys.argv) > 2 and sys.argv[2] == "dbg"
    txt = HEAD + f"; @launch kernel=fused_kernel grid=(256,1,1) block=(512,1,1) lds={LDS_TOTAL}\n"
    txt += '.amdgcn_target "amdgcn-amd-amdhsa--gfx950"\n' + gen()
    open(out, "w").write(txt)
```

```python
import math, struct, sys, os
import asmlib
from asmlib import Asm, srd, kernel_wrap
from layout import *
from k_conv import FB, CONV_WSZ
LFS = int(os.environ.get('LFS', 8)); FS = 1 << LFS
KVF_OFF = 0
HF_OFF = 320*FS
WF_OFF = HF_OFF + 1024*FS
ZF_OFF = WF_OFF + 512*FS
SZ_FL = (ZF_OFF + 1280*FS + 4095)//4096*4096
WP_OFF = FL_OFF + SZ_FL
SZ_WS = WP_OFF + SZ_WP
G0 = 16656
G1 = G0 + 4640
assert G1 + 4096 + 512 <= CONV_WSZ

def f32bits(x): return struct.unpack("<I", struct.pack("<f", x))[0]

SB = [0, 98304, 49152]
OFF_BG, OFF_BU = 32768, 40960
LDS_TOTAL = 163840
CS_OFF = 163328
LF_OFF = CS_OFF - 64
ST_L = LF_OFF - 1024
A_AREA = 98304
PK_L = 147456
PC_L = 0
ZT_L = 61440
PL_L = 71680
NTD = 6
KRG = 64*4096 + 128
NCV = 25
NST = 10
NS2 = 7
NWR = 6
SPIN = 1 << 13
DONE = 1000
assert 6*CONV_WSZ <= ST_L and PL_L + 16*5120 <= ST_L and PK_L + 10240 <= ST_L

P_Q, P_K, P_V, P_SH, P_SSMK, P_SSMD, P_WG, P_WU, P_WD, P_OUT, P_DBG, P_WS = 48, 50, 52, 54, 56, 58, 62, 64, 66, 68, 70, 72
S0, S1, S2, S3, SW, S5, S6 = 8, 12, 16, 20, 24, 28, 40
sWV, sXCD, sSLOT, sNON = 3, 4, 5, 6
sMT, sNT, sMT2, sNT2 = 34, 35, 36, 37
sWM, sWN = 80, 81
sHA = 44
sTOK, sMK, sZD, sWO, sWFO = 87, 88, 90, 91, 92
sCH, sLB, sD, sHP, sPR, sTASK, sNTASK, sGL = 32, 33, 38, 39, 7, 96, 97, 98
sKVF = 82
sZP = 93
def R(d): return f"s[{d}:{d+3}]"

DBG = False
XP = os.environ.get('XP', '')
VTS = 127
def ts(A, i, op="s_memrealtime"):
    if DBG:
        A(f"""
        {op} s[76:77]
        s_waitcnt lgkmcnt(0)
        v_writelane_b32 v{VTS}, s76, {i}
        """)
def tc(A, i): ts(A, i, "s_memtime")
def ts_store(A, vt):
    if not DBG: return
    A("s_waitcnt vmcnt(0)")
    ts(A, 15)
    A(f"""
    s_add_u32 s76, s{P_WS}, {32 << 20}
    s_addc_u32 s77, s{P_WS+1}, 0
    s_mov_b32 s78, 0x100000
    s_mov_b32 s79, 0x00020000
    s_lshl_b32 s75, s2, 3
    s_add_u32 s75, s75, s{sWV}
    s_lshl_b32 s75, s75, 8
    v_lshlrev_b32 v{vt}, 2, v1
    buffer_store_dword v{VTS}, v{vt}, s[76:79], s75 offen
    """)

def nonce_issue(A, v):
    A(f"buffer_load_dword v{v}, off, {R(S6)}, 0 sc1")
def nonce_ensure(A, v):
    L, D_ = A.label("L_non"), A.label("L_nond")
    A(f"""
    s_cmp_lg_u32 s{sNON}, 0
    s_cbranch_scc1 {D_}
    s_mov_b32 s74, {SPIN}
    {L}:
    buffer_load_dword v{v}, off, {R(S6)}, 0 sc1
    s_waitcnt vmcnt(0)
    v_readfirstlane_b32 s{sNON}, v{v}
    s_sub_u32 s74, s74, 1
    s_cmp_eq_u32 s74, 0
    s_cbranch_scc1 {D_}
    s_cmp_eq_u32 s{sNON}, 0
    s_cbranch_scc1 {L}
    {D_}:
    """)
def flag_store(A, v, soff):
    A(f"""
    v_mov_b32 v{v}, s{sNON}
    s_mov_b64 exec, 1
    buffer_store_dword v{v}, off, {R(SW)}, {soff} sc1
    s_mov_b64 exec, -1
    """)
def lds_wait_done(A, t):
    L, D_ = A.label("L_xw"), A.label("L_xwd")
    A(f"""
    v_mov_b32 v{t+8}, {LF_OFF}
    s_mov_b32 s74, {SPIN*8}
    {L}:
    ds_read_b128 v[{t}:{t+3}], v{t+8}
    ds_read_b128 v[{t+4}:{t+7}], v{t+8} offset:16
    s_waitcnt lgkmcnt(0)
    v_min_u32 v{t}, v{t}, v{t+1}
    v_min3_u32 v{t}, v{t}, v{t+2}, v{t+3}
    v_min3_u32 v{t}, v{t}, v{t+4}, v{t+5}
    v_min3_u32 v{t}, v{t}, v{t+6}, v{t+7}
    v_readfirstlane_b32 s100, v{t}
    s_cmp_ge_u32 s100, {DONE}
    s_cbranch_scc1 {D_}
    s_sleep 1
    s_sub_u32 s74, s74, 1
    s_cmp_lg_u32 s74, 0
    s_cbranch_scc1 {L}
    {D_}:
    """)

L16, XO, ZA, VFL, VZF, STR, T2, VP = 112, 113, 114, 115, 116, 118, 120, 121
VZ2 = 125
XR = 4
WR = 128
ACC2 = 16

def w_setup(A):
    A(f"""
    s_and_b32 s99, s{sWV}, 3
    s_add_u32 s74, s99, 28
    s_cmp_ge_u32 s{sWV}, 4
    s_cselect_b32 s74, s99, s74            ; kb0
    s_mul_i32 s{sWO}, s{sNT2}, 54
    s_add_u32 s{sWO}, s{sWO}, s74
    s_mul_i32 s{sWO}, s{sWO}, 5120
    s_add_u32 s{sWO}, s{sWO}, {WP_OFF}
    s_lshl_b32 s{sWFO}, s{sNT2}, {6+LFS}
    s_add_u32 s{sWFO}, s{sWFO}, {FL_OFF + WF_OFF}
    """)
def wload(n, reg=None):
    nb = n % 5
    r = WR + 4*n if reg is None else reg
    L = []
    if nb < 4:
        L.append(f"buffer_load_dwordx4 v[{r}:{r+3}], v{L16}, {R(SW)}, s{sWO} offen offset:{1024*nb}")
    else:
        L.append(f"s_add_u32 s{sWO}, s{sWO}, 4096")
        L.append(f"buffer_load_dwordx4 v[{r}:{r+3}], v{L16}, {R(SW)}, s{sWO} offen")
        L.append(f"s_add_u32 s{sWO}, s{sWO}, {4*5120 - 4096}")
    return L

def g2_setup(A, t):
    A(f"""
    s_and_b32 s99, s{sWV}, 3               ; j
    s_add_u32 s74, s99, 28
    s_cmp_ge_u32 s{sWV}, 4
    s_cselect_b32 s74, s99, s74            ; kb0
    s_mov_b32 s{sMK}, 0x1111111
    s_mov_b32 s{sMK+1}, 0
    s_lshl_b64 s[{sMK}:{sMK+1}], s[{sMK}:{sMK+1}], s74
    s_and_b32 s{sMK+1}, s{sMK+1}, 0x3fffff
    s_mul_i32 s101, s{sMT2}, {4*54*1024}
    s_lshl_b32 s100, s74, 10
    s_add_u32 s101, s101, s100
    s_add_u32 s101, s101, {H_OFF}
    """)
    for a in range(4):
        A(f"""
        s_add_u32 s100, s99, {1+a}
        s_and_b32 s100, s100, 3                ; f = tb
        s_mul_i32 s74, s100, {54*1024}
        s_add_u32 s{sHA+a}, s101, s74
        s_mul_i32 s74, s100, {3*5120}
        s_add_u32 s74, s74, {PC_L + a*5120}
        s_lshl_b32 s100, s100, 2
        s_add_u32 s100, s100, s99
        s_mul_i32 s100, s100, 5120
        s_add_u32 s100, s100, {PL_L}
        s_cmp_ge_u32 s{sWV}, 4
        s_cselect_b32 s74, s100, s74
        v_lshl_add_u32 v{VP+a}, v1, 4, s74
        """)
    A(f"""
    s_lshl_b32 s{sTOK}, s{sMT2}, 6
    s_lshl_b32 s100, s99, 4
    s_add_u32 s{sTOK}, s{sTOK}, s100
    s_mul_i32 s100, s{sNT2}, 160
    v_lshlrev_b32 v{L16}, 4, v1
    v_add_u32 v{t}, s{sTOK}, v2
    v_mul_u32_u24 v{XO}, 1280, v{t}
    v_lshl_add_u32 v{XO}, v3, 3, v{XO}
    v_add_u32 v{XO}, s100, v{XO}
    v_lshrrev_b32 v{t}, 2, v2
    v_lshl_add_u32 v{t}, v3, 2, v{t}
    v_and_b32 v{t+1}, 3, v2
    v_lshlrev_b32 v{t+1}, 3, v{t+1}
    s_mul_i32 s101, s99, 2560
    s_add_u32 s101, s101, {ZT_L}
    v_lshl_add_u32 v{ZA}, v{t}, 5, v{t+1}
    v_add_u32 v{ZA}, s101, v{ZA}
    """)
def x_loads(A):
    A(f"""
    v_add_u32 v{T2}, s{sTOK}, v2
    v_lshlrev_b32 v{T2}, 3, v{T2}
    s_mov_b32 s100, {ST_OFF}
    buffer_load_dwordx2 v[{STR}:{STR+1}], v{T2}, {R(SW)}, s100 offen sc1
    """)
    for nb in range(5):
        A(f"buffer_load_dwordx2 v[{XR+2*nb}:{XR+2*nb+1}], v{XO}, {R(S0)}, 0 offen offset:{32*nb}")

def g1_compute(A):
    XA, WA, VN = 4, 8, 12
    FR, ACC = 16, 128
    srd(A, S0, P_Q, SZ_X)
    A(f"""
    s_lshl_b32 s100, s{sMT}, 8
    s_lshl_b32 s101, s{sNT}, 4
    s_add_u32 s100, s100, s101
    s_lshl_b32 s101, s{sWV}, 2
    s_add_u32 s100, s100, s101
    v_add_u32 v13, s100, v3                ; row
    v_lshlrev_b32 v14, 3, v13
    v_mul_u32_u24 v13, 1280, v13
    v_lshl_add_u32 v13, v2, 4, v13
    s_cmp_ge_u32 s{sNT}, 16
    s_cbranch_scc1 L_g1c_ns0
    """)
    for i in range(5):
        A(f"buffer_load_dwordx4 v[{16+4*i}:{19+4*i}], v13, {R(S0)}, 0 offen offset:{256*i}")
    A(f"""
    L_g1c_ns0:
    s_or_b32 s100, s2, s{sWV}
    s_cmp_lg_u32 s100, 0
    s_cbranch_scc1 L_g1c_np
    s_memrealtime s[100:101]
    s_waitcnt lgkmcnt(0)
    s_max_u32 s100, s100, 1
    v_mov_b32 v4, s100
    s_mov_b64 exec, 1
    buffer_store_dword v4, off, {R(S6)}, 0 sc1
    s_mov_b64 exec, -1
    L_g1c_np:
    """)
    srd(A, S2, P_OUT, SZ_X)
    A(f"""
    s_lshr_b32 s{sWM}, s{sWV}, 1
    s_and_b32 s{sWN}, s{sWV}, 1
    v_lshrrev_b32 v40, 1, v2               ; sw
    v_xor_b32 v40, v40, v3
    v_lshlrev_b32 v41, 7, v2
    s_lshl_b32 s100, s{sWM}, 14
    v_add_u32 v41, s100, v41
    v_lshl_add_u32 v{XA}, v40, 4, v41
    v_xor_b32 v40, 4, v40
    v_lshl_add_u32 v{XA+1}, v40, 4, v41
    v_add_u32 v{XA+2}, {SB[1]}, v{XA}
    v_add_u32 v{XA+3}, {SB[1]}, v{XA+1}
    v_lshrrev_b32 v40, 2, v2
    v_lshl_add_u32 v40, v3, 3, v40         ; k = 8kq + i/4
    v_and_b32 v41, 3, v2
    v_lshlrev_b32 v41, 3, v41
    s_lshl_b32 s100, s{sWN}, 6
    v_add_u32 v41, s100, v41
    v_bfe_u32 v42, v2, 3, 1
    v_lshlrev_b32 v42, 5, v42
    v_xor_b32 v41, v41, v42
    v_and_b32 v42, 1, v3
    v_lshlrev_b32 v42, 6, v42
    v_xor_b32 v41, v41, v42
    v_lshl_add_u32 v{WA}, v40, 7, v41
    v_add_u32 v{WA}, {OFF_BG}, v{WA}
    v_xor_b32 v{WA+1}, 32, v{WA}
    v_add_u32 v{WA+2}, {SB[1]}, v{WA}
    v_add_u32 v{WA+3}, {SB[1]}, v{WA+1}
    """)
    g2_setup(A, 40)
    w_setup(A)
    A(f"""
    s_cmp_ge_u32 s{sNT}, 16
    s_cbranch_scc1 L_g1c_ns1
    s_mov_b32 s99, 0x3f803f80
    v_mov_b32 v40, 0
    v_mov_b32 v41, 0
    v_mov_b32 v42, 0
    v_mov_b32 v43, 0
    s_waitcnt vmcnt(0)
    """)
    for i in range(20):
        A(f"v_dot2c_f32_bf16 v{40+(i & 1)}, s99, v{16+i}")
        A(f"v_dot2c_f32_bf16 v{42+(i & 1)}, v{16+i}, v{16+i}")
    A("s_nop 3")
    A("v_add_f32 v40, v40, v41")
    A("v_add_f32 v41, v42, v43")
    for sh in (8, 4, 2, 1):
        for e in range(2):
            A(f"v_add_f32_dpp v{40+e}, v{40+e}, v{40+e} row_ror:{sh} row_mask:0xf bank_mask:0xf")
    A(f"""
    v_mul_f32 v40, {1.0/640!r}, v40
    v_mul_f32 v41, {1.0/640!r}, v41
    v_fma_f32 v41, -v40, v40, v41
    v_max_f32 v41, 0, v41
    v_cvt_pk_bf16_f32 v41, v41, v41
    v_lshlrev_b32 v41, 16, v41
    v_add_f32 v41, 0x3727c5ac, v41
    v_cvt_pk_bf16_f32 v41, v41, v41
    v_lshlrev_b32 v41, 16, v41
    v_sqrt_f32 v41, v41
    s_nop 0
    v_cvt_pk_bf16_f32 v13, v40, v41
    L_g1c_ns1:
    """)
    def reads(st, ks, fs):
        slot = st % 3
        F = FR + 48*fs
        hi = 2 if slot == 1 else 0
        so = SB[2] if slot == 2 else 0
        L = []
        for f4 in range(4):
            gu, fb = f4 // 2, f4 % 2
            for jj in range(2):
                L.append(f"ds_read_b64_tr_b16 v[{F+4*f4+2*jj}:{F+4*f4+2*jj+1}], v{WA+hi+fb} offset:{so + gu*8192 + ks*4096 + jj*512}")
        X = [f"ds_read_b128 v[{F+16+4*tb}:{F+19+4*tb}], v{XA+hi+ks} offset:{so + 2048*tb}" for tb in range(8)]
        return L[:2] + X[:1] + L[2:] + X[1:]
    ts(A, 1)
    A("s_barrier")
    ts(A, 2)
    tc(A, 13)
    for l in reads(0, 0, 0): A(l)
    nonce_issue(A, VN)
    CSR, STG = 16, 32
    step = 0
    for st in range(NST):
        for ks in range(2):
            fs = step & 1
            F = FR + 48*fs
            last = (st == NST-1 and ks == 1)
            A("s_waitcnt lgkmcnt(0)")
            if ks == 1: A("s_barrier")
            if last:
                tc(A, 14)
                ts(A, 6)
                pre = f"""
                s_lshl_b32 s100, s{sWN}, 7
                v_lshlrev_b32 v13, 4, v3
                s_add_u32 s100, s100, {CS_OFF}
                v_add_u32 v13, s100, v13
                s_lshl_b32 s101, s{sWM}, 9
                v_lshlrev_b32 v14, 2, v2
                s_add_u32 s101, s101, {ST_L}
                v_add_u32 v14, s101, v14
                """
                nxt = [x.strip() for x in pre.strip().split("\n")]
                for tb in range(8):
                    nxt.append(f"ds_read_b32 v{STG+tb}, v14 offset:{64*tb}")
                for f4 in range(4):
                    nxt.append(f"ds_read_b128 v[{CSR+4*f4}:{CSR+4*f4+3}], v13 offset:{(f4//2)*256 + (f4 % 2)*64}")
                post = f"""
                s_lshl_b32 s100, s{sMT}, 8
                s_lshl_b32 s101, s{sWM}, 7
                s_add_u32 s100, s100, s101
                s_lshr_b32 s74, s100, 4
                s_mul_i32 s74, s74, 54
                s_lshl_b32 s101, s{sNT}, 1
                s_add_u32 s101, s101, s{sWN}           ; kb
                s_add_u32 s74, s74, s101
                s_lshl_b32 s74, s74, 10
                s_add_u32 s74, s74, {H_OFF}
                s_lshr_b32 s100, s100, 7               ; mhalf
                s_lshl_b32 s100, s100, {6+LFS}
                s_lshl_b32 s101, s101, {LFS}
                s_add_u32 s100, s100, s101
                s_add_u32 s{sZP}, s100, {FL_OFF + HF_OFF}
                """
                nxt += [x.strip() for x in post.strip().split("\n")]
            else:
                nxt = reads(st, 1, 1-fs) if ks == 0 else reads(st+1, 0, 1-fs)
            ri = 0
            for mi in range(32):
                tb, f4 = mi // 4, mi % 4
                ac = ACC + tb*16 + f4*4
                src = "0" if step == 0 else f"v[{ac}:{ac+3}]"
                A(f"v_mfma_f32_16x16x32_bf16 v[{ac}:{ac+3}], v[{F+4*f4}:{F+4*f4+3}], v[{F+16+4*tb}:{F+19+4*tb}], {src}")
                if last:
                    for _ in range(2 if mi < 4 or mi > 16 else 1):
                        if ri < len(nxt): A(nxt[ri]); ri += 1
                elif (mi % 3 != 2) and ri < len(nxt):
                    A(nxt[ri]); ri += 1
                if step == 3 and mi == 26:
                    A(f"""
                    s_waitcnt vmcnt(0)
                    v_readfirstlane_b32 s{sNON}, v{VN}
                    """)
                    nonce_ensure(A, VN)
                    A(f"""
                    s_cmp_ge_u32 s{sNT}, 16
                    s_cbranch_scc1 L_g1c_ns2
                    v_mov_b32 v12, v13
                    v_mov_b32 v13, s{sNON}
                    s_mov_b32 s100, {ST_OFF}
                    s_mov_b32 exec_lo, 0x00010001
                    s_mov_b32 exec_hi, 0x00010001
                    buffer_store_dwordx2 v[12:13], v14, {R(SW)}, s100 offen sc1
                    s_mov_b64 exec, -1
                    L_g1c_ns2:
                    """)
            while ri < len(nxt): A(nxt[ri]); ri += 1
            step += 1
    ts(A, 3)
    c1 = -2.0*math.log2(math.e)*math.sqrt(2.0/math.pi)
    c2 = c1*0.044715
    A(f"""
    s_setprio 2
    s_mov_b32 s96, {hex(f32bits(c1))}
    s_mov_b32 s97, {hex(f32bits(c2))}
    s_waitcnt lgkmcnt(0)
    """)
    K0 = 48
    T = 64
    wn = 0
    for tb in range(8):
        g = STG + tb
        kk = K0 + 8*(tb & 1)
        NM, C1, C2, S2_ = kk, kk+2, kk+4, kk+6
        A(f"""
        v_and_b32 v{kk+1}, 0xffff0000, v{g}        ; s
        v_lshlrev_b32 v{NM}, 16, v{g}              ; m
        v_rcp_f32 v{kk+3}, v{kk+1}
        v_mul_f32 v{S2_}, v{kk+1}, v{kk+1}
        v_xor_b32 v{NM}, 0x80000000, v{NM}
        v_mul_f32 v{C1}, s96, v{kk+3}
        v_mul_f32 v{kk+5}, v{kk+3}, v{kk+3}
        v_mul_f32 v{C2}, s97, v{kk+3}
        v_mul_f32 v{C2}, v{C2}, v{kk+5}
        """)
        ag, au = ACC + tb*16, ACC + tb*16 + 8
        TT = T + 8*(tb & 1)
        bc = "op_sel_hi:[1,0,1]"
        P = range(4)
        for p in P: A(f"v_pk_fma_f32 v[{ag+2*p}:{ag+2*p+1}], v[{CSR+2*p}:{CSR+2*p+1}], v[{NM}:{NM+1}], v[{ag+2*p}:{ag+2*p+1}] {bc}")
        for p in P: A(f"v_pk_mul_f32 v[{TT+2*p}:{TT+2*p+1}], v[{ag+2*p}:{ag+2*p+1}], v[{ag+2*p}:{ag+2*p+1}]")
        for p in P: A(f"v_pk_fma_f32 v[{TT+2*p}:{TT+2*p+1}], v[{TT+2*p}:{TT+2*p+1}], v[{C2}:{C2+1}], v[{C1}:{C1+1}] op_sel_hi:[1,0,0]")
        for p in P: A(f"v_pk_mul_f32 v[{TT+2*p}:{TT+2*p+1}], v[{TT+2*p}:{TT+2*p+1}], v[{ag+2*p}:{ag+2*p+1}]")
        for p in P:
            A(f"v_exp_f32 v{TT+2*p}, v{TT+2*p}")
            A(f"v_exp_f32 v{TT+2*p+1}, v{TT+2*p+1}")
            A(f"v_pk_fma_f32 v[{au+2*p}:{au+2*p+1}], v[{CSR+8+2*p}:{CSR+8+2*p+1}], v[{NM}:{NM+1}], v[{au+2*p}:{au+2*p+1}] {bc}")
        for p in P: A(f"v_pk_fma_f32 v[{TT+2*p}:{TT+2*p+1}], v[{TT+2*p}:{TT+2*p+1}], v[{S2_}:{S2_+1}], v[{S2_}:{S2_+1}] op_sel_hi:[1,0,0]")
        for p in P:
            A(f"v_rcp_f32 v{TT+2*p}, v{TT+2*p}")
            A(f"v_rcp_f32 v{TT+2*p+1}, v{TT+2*p+1}")
            A(f"v_pk_mul_f32 v[{au+2*p}:{au+2*p+1}], v[{au+2*p}:{au+2*p+1}], v[{ag+2*p}:{ag+2*p+1}]")
        for p in P: A(f"v_pk_mul_f32 v[{TT+2*p}:{TT+2*p+1}], v[{TT+2*p}:{TT+2*p+1}], v[{au+2*p}:{au+2*p+1}]")
        O = 80 + 4*(tb % 4)
        for p in P: A(f"v_cvt_pk_bf16_f32 v{O+p}, v{TT+2*p}, v{TT+2*p+1}")
        A(f"buffer_store_dwordx4 v[{O}:{O+3}], v{L16}, {R(SW)}, s74 offen sc1")
        if tb < 7: A(f"s_add_u32 s74, s74, {54*1024}")
        ts(A, 16 + tb)
        if tb == 0: x_loads(A)
        for _ in range(4):
            if wn < 5*NWR:
                for l in wload(wn): A(l)
                wn += 1
        ts(A, 24 + tb)
    assert wn == 5*NWR
    ts(A, 4)
    A("s_setprio 0")
    A("s_branch L_g2_go")

CV = dict(t0=4, t1=5, t2=6, fa=7, ga=8, ka=9, hl=10, hd=11, lf=12, xa=13, zw=14,
          fa0=113, ga0=114, ka0=115, hl0=116, zo=117, ho=118, zp0=119, hd2=252, l16=L16, acc=16, F=48, G=80)

def conv_order():
    o = [(7,0),(6,0),(6,1),(5,0),(5,1),(5,2),(4,0),(4,1),(4,2),(4,3)]
    o += [(0,4),(0,7),(1,4),(2,4),(3,4),(0,5),(1,5),(2,5),(0,6),(1,6)]
    o += [(p, c) for c in range(4) for p in range(4)]
    assert sorted(o) == sorted((p, c) for p in range(8) for c in range(8-p))
    for a, b in zip(o, o[1:] + o[:1]): assert sum(a) != sum(b), (a, b)
    return o

def conv_setup(A):
    V = CV
    t0, t1, t2 = V["t0"], V["t1"], V["t2"]
    A(f"""
    s_and_b32 s{sHP}, s{sWV}, 1
    s_lshl_b32 s100, s{sHP}, 8             ; 256*hp
    s_lshl_b32 s101, s{sHP}, 11            ; 2048*hp
    v_add_u32 v{t2}, 1, v2
    v_and_b32 v{V['fa0']}, 3, v{t2}        ; j
    v_lshrrev_b32 v{t2}, 2, v{t2}
    v_lshlrev_b32 v{t2}, 4, v{t2}
    v_cmp_ne_u32 vcc, 0, v{V['fa0']}
    v_mul_u32_u24 v{V['fa0']}, 4160, v{V['fa0']}
    v_add_u32 v{V['fa0']}, v{V['fa0']}, v{t2}
    v_cndmask_b32 v{t2}, 0, 16, vcc
    v_add_u32 v{V['fa0']}, v{V['fa0']}, v{t2}
    v_lshlrev_b32 v{t2}, 4, v3
    v_sub_u32 v{V['fa0']}, v{V['fa0']}, v{t2}
    v_add_u32 v{V['fa0']}, 48, v{V['fa0']}
    v_add_u32 v{V['fa0']}, s100, v{V['fa0']}
    v_and_b32 v{V['ga0']}, 1, v2
    v_cmp_eq_u32 vcc, 1, v{V['ga0']}
    v_lshrrev_b32 v{V['ga0']}, 1, v2
    v_lshlrev_b32 v{V['ga0']}, 6, v{V['ga0']}
    v_add_u32 v{V['ga0']}, v{V['ga0']}, v{t2}
    v_mov_b32 v{t2}, {G1+4080-3584}
    v_mov_b32 v{t0}, {G0+4080-3584}
    v_cndmask_b32 v{t2}, v{t2}, v{t0}, vcc
    v_sub_u32 v{V['ga0']}, v{t2}, v{V['ga0']}
    v_add_u32 v{V['ga0']}, s100, v{V['ga0']}
    v_lshlrev_b32 v{t2}, 7, v3
    v_lshl_add_u32 v{V['zo']}, v2, 2, v{t2}
    v_add_u32 v{V['zo']}, s101, v{V['zo']}
    v_sub_u32 v{V['ka0']}, {G0+4092-1600}, v{V['zo']}
    v_add_u32 v{V['zo']}, 8192, v{V['zo']}
    v_lshlrev_b32 v{V['l16']}, 4, v1
    s_lshl_b32 s100, s{sHP}, 1
    v_and_b32 v{t1}, 1, v3
    v_add_u32 v{t1}, s100, v{t1}
    v_add_u32 v{t2}, v2, v{t1}
    v_subrev_u32 v{t2}, 16, v{t2}
    v_lshlrev_b32 v{V['ho']}, 2, v{t2}
    v_cmp_gt_i32 vcc, 0, v{t2}
    v_mov_b32 v{t2}, 0x7fff0000
    v_cndmask_b32 v{V['ho']}, v{V['ho']}, v{t2}, vcc
    v_cmp_ne_u32 vcc, 0, v{t1}
    v_mul_u32_u24 v{V['hl0']}, 4160, v{t1}
    v_cndmask_b32 v{t2}, 0, 16, vcc
    v_add_u32 v{V['hl0']}, v{V['hl0']}, v{t2}
    v_lshl_add_u32 v{V['hl0']}, v2, 2, v{V['hl0']}
    v_cmp_gt_u32 vcc, 32, v1
    v_mov_b32 v{t2}, {G1+4096-512}
    v_mov_b32 v{t0}, {G0+4096}
    v_cndmask_b32 v{t2}, v{t2}, v{t0}, vcc
    v_add_u32 v{V['zp0']}, v{t2}, v{V['l16']}
    s_lshl_b32 s100, s{sPR}, 3
    s_add_u32 s100, s100, {LF_OFF}
    v_mov_b32 v{V['lf']}, s100
    """)

def load_F(A, ch, lb, hd):
    V = CV
    A(f"""
    s_lshl_b32 s100, s{ch}, 12
    buffer_load_dword v{hd}, v{V['ho']}, {R(S3)}, s100 offen
    s_lshl_b32 s101, s{sHP}, 3
    s_add_u32 s100, s100, s101
    s_mul_i32 s101, s{sHP}, 8336
    s_add_u32 s101, s101, s{lb}
    s_add_u32 m0, s101, 64
    """)
    for i in range(4):
        A(f"buffer_load_dwordx4 v{V['l16']}, {R(S3)}, s100 offen offset:{1024*i} lds")
    A(f"""
    s_lshl_b32 s74, s{sHP}, 4
    s_sub_u32 s101, s101, s74
    s_add_u32 m0, s101, {4176+64}
    s_add_u32 s100, s100, 4
    """)
    for i in range(4):
        A(f"buffer_load_dwordx4 v{V['l16']}, {R(S3)}, s100 offen offset:{1024*i} lds")
def load_G(A, ch, lb):
    V = CV
    A(f"""
    s_lshl_b32 s100, s{ch}, 12
    s_lshr_b32 s101, s{ch}, 6
    s_lshl_b32 s101, s101, 6
    s_add_u32 s101, s101, s{sHP}
    s_lshl_b32 s101, s101, 1
    s_add_u32 s100, s100, s101
    s_add_u32 s100, s100, {KR_OFF}
    s_mul_i32 s101, s{sHP}, {G1-G0}
    s_add_u32 s101, s101, s{lb}
    s_add_u32 m0, s101, {G0}
    """)
    for i in range(4):
        A(f"buffer_load_dwordx4 v{V['l16']}, {R(SW)}, s100 offen offset:{1024*i} lds")
def zero_pads(A, lb, z4, t):
    A(f"""
    v_add_u32 v{t}, s{lb}, v{CV['zp0']}
    v_mov_b32 v{z4}, 0
    v_mov_b32 v{z4+1}, 0
    v_mov_b32 v{z4+2}, 0
    v_mov_b32 v{z4+3}, 0
    ds_write_b128 v{t}, v[{z4}:{z4+3}]
    """)
def kv_poll(A, v, va):
    L, D_ = A.label("L_kvp"), A.label("L_kvd")
    A(f"""
    s_mov_b32 s74, {SPIN}
    {L}:
    buffer_load_dword v{v}, v{va}, {R(SW)}, s{sKVF} offen sc1
    s_waitcnt vmcnt(0)
    v_cmp_ne_u32 vcc, s{sNON}, v{v}
    s_cmp_eq_u32 vcc_lo, 0
    s_cbranch_scc1 {D_}
    s_sub_u32 s74, s74, 1
    s_cmp_lg_u32 s74, 0
    s_cbranch_scc1 {L}
    {D_}:
    """)

def pair_signal(A, k):
    V = CV
    A(f"""
    s_lshl_b32 s100, s{sTASK}, 2
    s_add_u32 s100, s100, {k}
    s_lshl_b32 s101, s{sHP}, 2
    v_mov_b32 v{V['t0']}, s100
    v_add_u32 v{V['t1']}, s101, v{V['lf']}
    ds_write_b32 v{V['t1']}, v{V['t0']}
    """)
def pair_wait(A, k):
    V = CV
    L, D_ = A.label("L_pw"), A.label("L_pwd")
    A(f"""
    s_lshl_b32 s100, s{sTASK}, 2
    s_add_u32 s100, s100, {k}
    s_lshl_b32 s101, s{sHP}, 2
    s_xor_b32 s101, s101, 4
    v_add_u32 v{V['t1']}, s101, v{V['lf']}
    s_mov_b32 s99, {SPIN*8}
    {L}:
    ds_read_b32 v{V['t0']}, v{V['t1']}
    s_waitcnt lgkmcnt(0)
    v_readfirstlane_b32 s101, v{V['t0']}
    s_cmp_ge_u32 s101, s100
    s_cbranch_scc1 {D_}
    s_sub_u32 s99, s99, 1
    s_cmp_lg_u32 s99, 0
    s_cbranch_scc1 {L}
    {D_}:
    """)

def conv_task(A):
    V = CV
    ACC, Fb, Gb = V["acc"], V["F"], V["G"]
    A("L_conv:")
    A(f"""
    s_lshr_b32 s100, s{sCH}, 1
    s_lshl_b32 s100, s100, 2
    s_load_dword s{sD}, s[{P_SSMD}:{P_SSMD+1}], s100
    v_add_u32 v{V['fa']}, s{sLB}, v{V['fa0']}
    v_add_u32 v{V['ga']}, s{sLB}, v{V['ga0']}
    v_add_u32 v{V['ka']}, s{sLB}, v{V['ka0']}
    v_add_u32 v{V['hl']}, s{sLB}, v{V['hl0']}
    v_add_u32 v{V['xa']}, s{sLB}, v{V['l16']}
    v_add_u32 v{V['zw']}, s{sLB}, v{V['zo']}
    s_bitcmp0_b32 s{sGL}, 0
    s_cbranch_scc1 L_conv_nw
    s_bitcmp1_b32 s{sGL}, 3
    s_cbranch_scc1 L_conv_w30
    s_waitcnt vmcnt(0)
    L_conv_w30:
    s_waitcnt vmcnt({5*NWR})
    ds_write_b32 v{V['hl']}, v{V['hd']}
    s_bitcmp0_b32 s{sGL}, 4
    s_cbranch_scc1 L_conv_nh
    v_add_u32 v{V['t0']}, {4*CONV_WSZ}, v{V['hl']}
    ds_write_b32 v{V['t0']}, v{V['hd2']}
    L_conv_nh:
    s_cmp_eq_u32 s{sHP}, 0
    s_cbranch_scc1 L_conv_nw
    s_add_u32 s100, s{sLB}, {G1+4094}
    v_mov_b32 v{V['t0']}, s100
    v_mov_b32 v{V['t1']}, 0
    s_mov_b64 exec, 1
    ds_write_b16 v{V['t0']}, v{V['t1']}
    s_bitcmp0_b32 s{sGL}, 4
    s_cbranch_scc1 L_conv_nf2
    v_add_u32 v{V['t0']}, {4*CONV_WSZ}, v{V['t0']}
    ds_write_b16 v{V['t0']}, v{V['t1']}
    L_conv_nf2:
    s_mov_b64 exec, -1
    L_conv_nw:
    s_waitcnt lgkmcnt(0)
    s_bitcmp1_b32 s{sCH}, 0
    s_cbranch_scc1 L_conv_odd
    s_lshl_b32 s{sD}, s{sD}, 16
    L_conv_odd:
    s_and_b32 s{sD}, s{sD}, 0xffff0000
    """)
    pair_signal(A, 1)
    pair_wait(A, 1)
    ts(A, 6)
    order = conv_order()
    def rd(kind, i, r):
        if kind == "F":
            reg = Fb + 4*i
            return f"ds_read_b128 v[{reg}:{reg+3}], v{V['fa']} offset:{512*i + 64*r}"
        reg = Gb + 4*i
        return f"ds_read_b128 v[{reg}:{reg+3}], v{V['ga']} offset:{3584 - 512*i + 64*r}"
    q = []
    first = []
    for p, c in order:
        for t in (("F", p), ("G", c)):
            if t not in first: first.append(t)
    for kind, i in first:
        A(rd(kind, i, 0)); q.append((kind, i, 0))
    lastuse = {}
    for k, (p, c) in enumerate(order):
        lastuse[("F", p)] = k; lastuse[("G", c)] = k
    NR = 4
    ob = Fb + 24
    done = -1
    for r in range(NR):
        seen = set()
        for k, (p, c) in enumerate(order):
            qq = p + c
            need = max(q.index(("F", p, r)), q.index(("G", c, r)))
            if need > done:
                n = len(q) - 1 - need
                A(f"s_waitcnt lgkmcnt({min(n, 15)})")
                done = need if n <= 15 else len(q) - 1 - 15
                assert done >= need
            src = "0" if (r == 0 and qq not in seen) else f"v[{ACC+4*qq}:{ACC+4*qq+3}]"
            seen.add(qq)
            A(f"v_mfma_f32_16x16x32_bf16 v[{ACC+4*qq}:{ACC+4*qq+3}], v[{Gb+4*c}:{Gb+4*c+3}], v[{Fb+4*p}:{Fb+4*p+3}], {src}")
            if r < NR-1:
                for kind, i in (("G", c), ("F", p)):
                    if lastuse[(kind, i)] == k:
                        A(rd(kind, i, r+1)); q.append((kind, i, r+1))
            elif 3 <= k < 11:
                j = k - 3
                A(f"ds_read_b32 v{ob + j}, v{V['ka']} offset:{1600 - 512*(j//2) - 64*(j % 2)}"); q.append(("kv", j))
            if k == 22 and r == NR-1:
                A("s_waitcnt lgkmcnt(0)"); done = len(q) - 1
                pair_signal(A, 2); q.append(("sig", 2))
            if k == 30 and r == 1:
                A(f"""
                s_cmp_eq_u32 s{sTASK}, 0
                s_cbranch_scc1 L_conv_npf
                s_waitcnt vmcnt(0)
                """)
                flag_store(A, V['t0'], f"s{sZD}")
                A("L_conv_npf:")
    pair_wait(A, 2)
    A(f"""
    s_cmp_eq_u32 s{sHP}, 0
    s_cbranch_scc1 L_conv_x0
    """)
    for q_ in range(4): A(f"ds_write_b128 v{V['xa']}, v[{ACC+4*q_}:{ACC+4*q_+3}] offset:{4096 + 1024*q_}")
    for i in range(16): A(f"v_mov_b32 v{ACC+i}, v{ACC+16+i}")
    A(f"s_branch L_conv_x1")
    A("L_conv_x0:")
    for q_ in range(4): A(f"ds_write_b128 v{V['xa']}, v[{ACC+16+4*q_}:{ACC+16+4*q_+3}] offset:{1024*q_}")
    A("L_conv_x1:")
    A("s_waitcnt lgkmcnt(0)")
    pair_signal(A, 3)
    pair_wait(A, 3)
    A(f"""
    s_xor_b32 s100, s{sHP}, 1
    s_lshl_b32 s100, s100, 12
    v_add_u32 v{V['t2']}, s100, v{V['xa']}
    """)
    for q_ in range(4): A(f"ds_read_b128 v[{ACC+16+4*q_}:{ACC+16+4*q_+3}], v{V['t2']} offset:{1024*q_}")
    t0, t1 = V["t2"], V["hd"]
    for q_ in range(4):
        A(f"s_waitcnt lgkmcnt({3-q_})" if q_ == 0 else f"s_waitcnt lgkmcnt({3-q_+2*q_})")
        for hh in range(2):
            kvr = ob + 2*q_ + hh
            a0 = ACC + 4*q_ + 2*hh
            A(f"""
            v_and_b32 v{V['t0']}, 0xffff0000, v{kvr}
            v_lshlrev_b32 v{t1}, 16, v{kvr}
            v_add_f32 v{a0}, v{a0}, v{a0+16}
            v_add_f32 v{a0+1}, v{a0+1}, v{a0+17}
            v_fmac_f32 v{a0}, s{sD}, v{V['t0']}
            v_fmac_f32 v{a0+1}, s{sD}, v{t1}
            v_cvt_pk_bf16_f32 v{kvr}, v{a0}, v{a0+1}
            ds_write_b32 v{V['zw']}, v{kvr} offset:{512*q_ + 64*hh}
            """)
    A(f"""
    s_lshl_b32 s100, s{sHP}, 11
    s_lshl_b32 s74, s{sCH}, 12
    s_add_u32 s74, s74, s100
    s_add_u32 s74, s74, {ZT_OFF}
    s_add_u32 s100, s100, 8192
    v_add_u32 v{t0}, s100, v{V['xa']}
    s_waitcnt lgkmcnt(0)
    ds_read_b128 v[{ACC}:{ACC+3}], v{t0}
    ds_read_b128 v[{ACC+4}:{ACC+7}], v{t0} offset:1024
    s_mul_i32 s100, s{sHP}, {640*FS}
    s_lshl_b32 s101, s{sCH}, {LFS}
    s_add_u32 s100, s100, s101
    s_add_u32 s{sZD}, s100, {FL_OFF + ZF_OFF}
    s_waitcnt lgkmcnt(0)
    buffer_store_dwordx4 v[{ACC}:{ACC+3}], v{V['l16']}, {R(SW)}, s74 offen sc1
    buffer_store_dwordx4 v[{ACC+4}:{ACC+7}], v{V['l16']}, {R(SW)}, s74 offen offset:1024 sc1
    """)
    ts(A, 7)
    A(f"""
    s_add_u32 s100, s{sTASK}, 1
    s_cmp_ge_u32 s100, s{sNTASK}
    s_cbranch_scc1 L_conv_done
    s_mov_b32 s{sTASK}, s100
    s_add_u32 s{sCH}, s{sCH}, 4
    s_add_u32 s{sLB}, s{sLB}, {4*CONV_WSZ}
    s_mov_b32 s{sGL}, 0
    s_branch L_conv
    L_conv_done:
    s_lshl_b32 s101, s{sHP}, 2
    v_mov_b32 v{V['t0']}, {DONE}
    v_add_u32 v{V['t1']}, s101, v{V['lf']}
    ds_write_b32 v{V['t1']}, v{V['t0']}
    s_mov_b32 s{sZP}, s{sZD}
    L_g2_lentry:
    """)
    srd(A, S0, P_Q, SZ_X)
    srd(A, S2, P_OUT, SZ_X)
    g2_setup(A, 16)
    A(f"""
    s_cmp_ge_u32 s{sWV}, 4
    s_cbranch_scc1 L_g2_go
    """)
    x_loads(A)
    lds_wait_done(A, 16)

def g1_loader(A):
    VA, VB, CA, CSA, ONE, TMP, VN = 16, 24, 26, 32, 40, 48, 15
    VKF, VL4, VST, VSO, VWF, WVP, WAP, PKR = 64, 65, 66, 68, 69, 70, 75, 80
    VKA, VWA = 108, 109
    srd(A, S0, P_Q, SZ_X)
    srd(A, S1, P_WG, SZ_W1)
    srd(A, S2, P_WU, SZ_W1)
    A(f"""
    s_sub_u32 s96, s{sWV}, 4               ; lw
    v_lshrrev_b32 v4, 3, v1                ; l/8
    v_and_b32 v5, 7, v1                    ; l%8
    s_lshl_b32 s101, s96, 4
    v_add_u32 v6, s101, v4                 ; k row
    v_mul_u32_u24 v6, 3456, v6
    v_and_b32 v7, 1, v3
    v_lshlrev_b32 v7, 1, v7
    v_xor_b32 v7, v7, v5
    v_xor_b32 v8, 4, v7
    s_lshl_b32 s101, s{sNT}, 7
    v_add_u32 v6, s101, v6
    v_lshl_add_u32 v{VB}, v7, 4, v6
    v_lshl_add_u32 v{VB+1}, v8, 4, v6
    v_add_u32 v{VB+1}, {8*3456 - 1024}, v{VB+1}
    s_lshl_b32 s32, s96, 13                ; lw*8192
    s_lshl_b32 s33, s96, 11                ; lw*2048
    s_lshl_b32 s100, s{sMT}, 8
    s_lshl_b32 s101, s96, 6
    s_add_u32 s83, s100, s101
    v_add_u32 v6, s83, v4
    v_mul_u32_u24 v6, 1280, v6
    v_xor_b32 v7, v5, v3
    v_xor_b32 v8, 4, v7
    v_lshl_add_u32 v7, v7, 4, v6
    v_lshl_add_u32 v8, v8, 4, v6
    """)
    for i in range(8):
        A(f"v_add_u32 v{VA+i}, {10240*i - 1024*(i % 4)}, v{7 + (i & 1)}")
    q = []
    def issue(st):
        sb = SB[st % 3]
        A(f"s_mov_b32 s100, {st*128}")
        A(f"s_mov_b32 s101, {st*64*3456}")
        A(f"s_add_u32 m0, s33, {sb + OFF_BG}")
        for i in range(2): A(f"buffer_load_dwordx4 v{VB+i}, {R(S1)}, s101 offen offset:{1024*i} lds")
        A(f"s_add_u32 m0, s33, {sb + OFF_BU}")
        for i in range(2): A(f"buffer_load_dwordx4 v{VB+i}, {R(S2)}, s101 offen offset:{1024*i} lds")
        for hh in range(2):
            A(f"s_add_u32 m0, s32, {sb + hh*4096}")
            for i in range(4): A(f"buffer_load_dwordx4 v{VA+4*hh+i}, {R(S0)}, s100 offen offset:{1024*i} lds")
        q.extend([("st", st)]*12)
    def after(tag, pk=False):
        i0 = max(i for i, x in enumerate(q) if x == tag)
        return sum(1 for x in q[i0+1:] if pk or x != ("pk",))
    def wait_for(tag):
        n, npk = after(tag), after(tag, True)
        if n != npk:
            L = A.label("L_wpk")
            A(f"s_waitcnt vmcnt({npk})")
            A("s_cmp_lt_u32 s96, 2")
            A(f"s_cbranch_scc1 {L}")
            A(f"s_waitcnt vmcnt({n})")
            A(f"{L}:")
        else:
            A(f"s_waitcnt vmcnt({n})")
    issue(0)
    srd(A, S5, P_WD, SZ_WD)
    A(f"""
    s_cmp_ge_u32 s96, 2
    s_cbranch_scc1 L_g1l_npk
    s_mul_i32 s84, s{sXCD}, 27
    s_add_u32 s84, s84, s{sSLOT}
    s_lshl_b32 s84, s84, 1
    s_add_u32 s84, s84, s96                ; id
    s_mul_i32 s85, s84, 1214
    s_lshr_b32 s85, s85, 16                ; n2p
    s_mul_i32 s86, s85, 54
    s_sub_u32 s86, s84, s86                ; kbp
    s_mul_i32 s100, s85, 160
    """)
    assert all((i*1214) >> 16 == i // 54 for i in range(432))
    for i in range(5):
        A(f"""
        v_add_u32 v4, {64*i}, v1
        v_mul_u32_u24 v5, 205, v4
        v_lshrrev_b32 v5, 11, v5
        v_mul_u32_u24 v6, 10, v5
        v_sub_u32 v6, v4, v6
        v_mul_u32_u24 v7, 1280, v5
        v_lshl_add_u32 v7, v6, 4, v7
        v_add_u32 v7, s100, v7
        v_subrev_u32 v{WVP+i}, {1024*(i % 4)}, v7
        """)
    A(f"""
    s_mul_i32 s100, s86, 40960
    s_mul_i32 s101, s96, 5120
    s_add_u32 m0, s101, {PK_L}
    """)
    for i in range(4):
        A(f"buffer_load_dwordx4 v{WVP+i}, {R(S5)}, s100 offen offset:{1024*i} lds")
    A(f"s_add_u32 m0, s101, {PK_L + 4096}")
    A(f"buffer_load_dwordx4 v{WVP+4}, {R(S5)}, s100 offen lds")
    A(f"""
    v_lshrrev_b32 v4, 2, v2
    v_lshl_add_u32 v4, v3, 2, v4
    v_and_b32 v5, 3, v2
    v_lshlrev_b32 v5, 3, v5
    v_mul_u32_u24 v{WAP}, 160, v4
    s_add_u32 s101, s101, {PK_L}
    v_add3_u32 v{WAP}, v{WAP}, v5, s101
    s_lshl_b32 s85, s85, {6+LFS}
    s_lshl_b32 s86, s86, {LFS}
    s_add_u32 s85, s85, s86
    s_add_u32 s85, s85, {FL_OFF + WF_OFF}
    s_mul_i32 s84, s84, 5120
    s_add_u32 s84, s84, {WP_OFF}
    L_g1l_npk:
    """)
    q.extend([("pk",)]*5)
    issue(1); issue(2)
    A(f"""
    s_cmp_lg_u32 s{sWV}, 4
    s_cbranch_scc1 L_g1l_np
    s_cmp_lt_u32 s{sSLOT}, {NCV}
    s_cselect_b32 s100, 0, {DONE}
    v_mov_b32 v4, {LF_OFF}
    v_mov_b32 v8, s100
    v_mov_b32 v9, s100
    v_mov_b32 v10, s100
    v_mov_b32 v11, s100
    ds_write_b128 v4, v[8:11]
    v_mov_b32 v8, {DONE}
    v_mov_b32 v9, {DONE}
    v_mov_b32 v10, {DONE}
    v_mov_b32 v11, {DONE}
    ds_write_b128 v4, v[8:11] offset:16
    L_g1l_np:
    v_lshrrev_b32 v4, 2, v2
    v_lshl_add_u32 v4, v3, 3, v4           ; k
    v_and_b32 v5, 3, v2
    v_lshlrev_b32 v5, 3, v5
    s_lshr_b32 s100, s96, 1
    s_lshl_b32 s100, s100, 6
    v_add_u32 v5, s100, v5
    v_bfe_u32 v6, v2, 3, 1
    v_lshlrev_b32 v6, 5, v6
    v_xor_b32 v5, v5, v6
    v_and_b32 v6, 1, v3
    v_lshlrev_b32 v6, 6, v6
    v_xor_b32 v5, v5, v6
    v_lshl_add_u32 v{CA}, v4, 7, v5
    s_and_b32 s100, s96, 1
    s_lshl_b32 s100, s100, 13
    s_add_u32 s100, s100, {OFF_BG}
    v_add_u32 v{CA}, s100, v{CA}
    v_xor_b32 v{CA+1}, 32, v{CA}
    v_add_u32 v{CA+2}, {SB[1]}, v{CA}
    v_add_u32 v{CA+3}, {SB[1]}, v{CA+1}
    v_lshlrev_b32 v{VL4}, 2, v1
    v_min_u32 v{VKA}, 31, v1
    v_lshlrev_b32 v{VKA}, {LFS}, v{VKA}
    v_min_u32 v{VWA}, 53, v1
    v_lshlrev_b32 v{VWA}, {LFS}, v{VWA}
    s_bfe_u32 s{sPR}, s{sWV}, 0x10001
    """)
    for i in range(4): A(f"v_mov_b32 v{ONE+i}, 0x3f803f80")
    conv_setup(A)
    w_setup(A)
    srd(A, S3, P_SSMK, SZ_SSM)
    def colsum(st):
        slot = st % 3
        hi = 2 if slot == 1 else 0
        so = SB[2] if slot == 2 else 0
        n = 0
        for ks in range(2):
            for fb in range(2):
                for jj in range(2):
                    A(f"ds_read_b64_tr_b16 v[{TMP+2*n}:{TMP+2*n+1}], v{CA+hi+fb} offset:{so + ks*4096 + jj*512}")
                    n += 1
        for n in range(4):
            fb = n % 2
            A(f"s_waitcnt lgkmcnt({6-2*n})")
            src = "0" if (st == 0 and n < 2) else f"v[{CSA+4*fb}:{CSA+4*fb+3}]"
            A(f"v_mfma_f32_16x16x32_bf16 v[{CSA+4*fb}:{CSA+4*fb+3}], v[{TMP+4*n}:{TMP+4*n+3}], v[{ONE}:{ONE+3}], {src}")
    A(f"""
    s_mul_i32 s100, s{sXCD}, {NCV}
    s_add_u32 s100, s100, s{sSLOT}
    s_lshl_b32 s100, s100, 1
    s_add_u32 s100, s100, {40*NTD}
    s_add_u32 s95, s100, s{sPR}            ; channel (s95)
    s_lshr_b32 s101, s100, 6
    s_lshl_b32 s{sKVF}, s101, {5+LFS}
    s_add_u32 s{sKVF}, s{sKVF}, {FL_OFF + KVF_OFF}
    s_mul_i32 s94, s{sPR}, {CONV_WSZ}
    s_add_u32 s94, s94, {A_AREA}           ; area (s94)
    s_mov_b32 s{sGL}, 1
    v_add_u32 v{VSO}, s83, v1
    v_lshlrev_b32 v{VSO}, 3, v{VSO}
    """)
    wait_for(("st", 0))
    ts(A, 1)
    A("s_barrier")
    WSCHED = {6: 10, 7: 12, 8: 8}
    wn = 0
    def wl(n):
        nonlocal wn
        for _ in range(n):
            for l in wload(wn): A(l)
            wn += 1; q.append(("w",))
    for st in range(NST):
        if st == 8:
            A(f"""
            s_cmp_ge_u32 s{sSLOT}, {NCV}
            s_cbranch_scc1 L_g1l_c8n
            """)
            load_F(A, 95, 94, CV['hd'])
            zero_pads(A, 94, 76, 49)
            colsum(8)
            n9 = after(("vkf",))
            A(f"""
            s_waitcnt vmcnt({n9 + 9})
            v_cmp_ne_u32 vcc, s{sNON}, v{VKF}
            s_cmp_lg_u32 vcc_lo, 0
            s_cbranch_scc1 L_g1l_c8d
            """)
            load_G(A, 95, 94)
            A(f"s_mov_b32 s{sGL}, 3")
            A("s_branch L_g1l_c8d")
            A("L_g1l_c8n:")
            colsum(8)
            A(f"s_waitcnt vmcnt({n9})")
            A("L_g1l_c8d:")
            ts(A, 26 + 8)
            A("s_barrier")
            ts(A, 16 + 8)
            wl(WSCHED[8])
            continue
        colsum(st)
        if st < NST-1:
            wait_for(("st", st+1))
            if st == 0:
                A(f"""
                s_cmp_ge_u32 s96, 2
                s_cbranch_scc1 L_g1l_npk1
                """)
                for nb in range(5):
                    for jj in range(2):
                        A(f"ds_read_b64_tr_b16 v[{PKR+4*nb+2*jj}:{PKR+4*nb+2*jj+1}], v{WAP} offset:{jj*2560 + nb*32}")
                A("L_g1l_npk1:")
            if st == 2:
                A(f"v_readfirstlane_b32 s{sNON}, v{VN}")
            if st == 6:
                L, D_ = A.label("L_wf"), A.label("L_wfd")
                A(f"""
                s_mov_b32 s74, {SPIN}
                {L}:
                v_cmp_ne_u32 vcc, s{sNON}, v{VWF}
                s_and_b32 vcc_hi, vcc_hi, 0x3fffff
                s_cmp_eq_u64 vcc, 0
                s_cbranch_scc1 {D_}
                buffer_load_dword v{VWF}, v{VWA}, {R(SW)}, s{sWFO} offen sc1
                s_waitcnt vmcnt(0)
                s_sub_u32 s74, s74, 1
                s_cmp_lg_u32 s74, 0
                s_cbranch_scc1 {L}
                {D_}:
                """)
            ts(A, 26 + st)
            A("s_barrier")
            ts(A, 16 + st)
            if st == 0:
                nonce_issue(A, VN); q.append(("non",))
                A(f"""
                s_cmp_ge_u32 s96, 2
                s_cbranch_scc1 L_g1l_npk2
                s_waitcnt lgkmcnt(0)
                """)
                for nb in range(4):
                    A(f"buffer_store_dwordx4 v[{PKR+4*nb}:{PKR+4*nb+3}], v{L16}, {R(SW)}, s84 offen offset:{1024*nb} sc1")
                A("s_add_u32 s84, s84, 4096")
                A(f"buffer_store_dwordx4 v[{PKR+16}:{PKR+19}], v{L16}, {R(SW)}, s84 offen sc1")
                A("L_g1l_npk2:")
                q.extend([("pk",)]*5)
            if st == 2:
                nonce_ensure(A, VN)
                A(f"""
                s_cmp_ge_u32 s96, 2
                s_cbranch_scc1 L_g1l_npk3
                """)
                flag_store(A, 4, "s85")
                A("L_g1l_npk3:")
                q.append(("pk",))
            if st == 4:
                A(f"buffer_load_dword v{VWF}, v{VWA}, {R(SW)}, s{sWFO} offen sc1"); q.append(("vwf",))
            if st + 3 < NST: issue(st + 3)
            if st == 6:
                A(f"s_mov_b32 s100, {ST_OFF}")
                A(f"buffer_load_dwordx2 v[{VST}:{VST+1}], v{VSO}, {R(SW)}, s100 offen sc1"); q.append(("vst",))
                A(f"buffer_load_dword v{VKF}, v{VKA}, {R(SW)}, s{sKVF} offen sc1"); q.append(("vkf",))
            if st in WSCHED: wl(WSCHED[st])
    assert wn == 5*NWR
    L, D_ = A.label("L_stc"), A.label("L_stok")
    A(f"""
    s_mov_b32 s74, {SPIN}
    s_mov_b32 s100, {ST_OFF}
    {L}:
    v_cmp_ne_u32 vcc, s{sNON}, v{VST+1}
    s_cmp_eq_u64 vcc, 0
    s_cbranch_scc1 {D_}
    buffer_load_dwordx2 v[{VST}:{VST+1}], v{VSO}, {R(SW)}, s100 offen sc1
    s_waitcnt vmcnt(0)
    s_sub_u32 s74, s74, 1
    s_cmp_lg_u32 s74, 0
    s_cbranch_scc1 {L}
    {D_}:
    s_lshl_b32 s101, s96, 8
    s_add_u32 s101, s101, {ST_L}
    v_add_u32 v49, s101, v{VL4}
    ds_write_b32 v49, v{VST}
    s_lshr_b32 s101, s96, 1
    s_lshl_b32 s101, s101, 7
    s_and_b32 s100, s96, 1
    s_lshl_b32 s100, s100, 8
    s_add_u32 s100, s100, s101
    s_add_u32 s100, s100, {CS_OFF}
    v_lshlrev_b32 v49, 4, v3
    v_add_u32 v49, s100, v49
    s_mov_b32 exec_lo, 0x00010001
    s_mov_b32 exec_hi, 0x00010001
    ds_write_b128 v49, v[{CSA}:{CSA+3}]
    ds_write_b128 v49, v[{CSA+4}:{CSA+7}] offset:64
    s_mov_b64 exec, -1
    s_waitcnt lgkmcnt(0)
    s_barrier
    """)
    ts(A, 3)
    A(f"""
    s_cmp_ge_u32 s{sSLOT}, {NCV}
    s_cbranch_scc1 L_g2_lentry
    s_cmp_lg_u32 s{sGL}, 1
    s_mov_b32 s{sGL}, 1
    s_cbranch_scc1 L_g1l_gd
    """)
    kv_poll(A, VKF, VKA)
    load_G(A, 95, 94)
    A(f"""
    L_g1l_gd:
    s_mov_b32 s{sCH}, s95
    s_mov_b32 s{sLB}, s94
    s_mov_b32 s{sTASK}, 0
    s_mov_b32 s{sNTASK}, 1
    s_branch L_conv
    """)

def prep(A):
    KR, VR, KV, VF, TP, KF, OUT, SK = 16, 64, 96, 120, 128, 160, 192, 192
    B0 = 13
    VN = 124
    SO, SWa, SRa, SC_ = 248, 249, 250, 251
    V = CV
    A(f"""
    s_cmp_lg_u32 s{sWV}, 6
    s_cbranch_scc1 L_pr_nz
    v_mov_b32 v4, {LF_OFF}
    v_mov_b32 v{KV}, 0
    v_mov_b32 v{KV+1}, 0
    v_mov_b32 v{KV+2}, 0
    v_mov_b32 v{KV+3}, 0
    ds_write_b128 v4, v[{KV}:{KV+3}]
    ds_write_b128 v4, v[{KV}:{KV+3}] offset:16
    s_waitcnt lgkmcnt(0)
    L_pr_nz:
    s_barrier
    """)
    srd(A, S0, P_K, SZ_X)
    srd(A, S1, P_V, SZ_X)
    srd(A, S2, P_SH, 640*8)
    srd(A, S3, P_SSMK, SZ_SSM)
    A(f"""
    s_mul_i32 s96, s{sXCD}, 5
    s_add_u32 s96, s96, s{sSLOT}
    s_sub_u32 s86, s96, 27                 ; p
    s_mul_i32 s97, s86, 52
    s_lshr_b32 s97, s97, 8                 ; te = p/5
    s_mul_i32 s98, s97, 5
    s_sub_u32 s95, s86, s98                ; p%5
    s_cmp_ge_u32 s{sWV}, 4
    s_cselect_b32 s98, 5, 0
    s_add_u32 s98, s98, s95
    s_and_b32 s100, s{sWV}, 3
    s_lshl_b32 s96, s97, 2
    s_add_u32 s96, s96, s100
    s_lshl_b32 s99, s96, 6                 ; T0
    s_sub_u32 s100, s99, 4
    s_mul_i32 s100, s100, 1280
    s_lshl_b32 s101, s98, 7
    s_add_u32 s100, s100, s101
    v_lshrrev_b32 v8, 3, v1                ; tg
    v_and_b32 v9, 7, v1                    ; cg
    v_mul_u32_u24 v{B0}, 10240, v8
    v_lshl_add_u32 v{B0}, v9, 4, v{B0}
    v_add_u32 v{B0}, s100, v{B0}
    v_add_u32 v{B0+1}, 5120, v{B0}
    v_add_u32 v{B0+2}, 10240, v{B0}
    s_lshl_b32 s87, s98, 9
    v_lshlrev_b32 v10, 6, v9
    """)
    for i in range(4):
        A(f"buffer_load_dwordx4 v[{SK+4*i}:{SK+4*i+3}], v10, {R(S2)}, s87 offen offset:{16*i}")
    def ldk(r): A(f"buffer_load_dwordx4 v[{KR+4*r}:{KR+4*r+3}], v{B0+r//4}, {R(S0)}, 0 offen offset:{(r % 4)*1280}")
    def ldv(i):
        r = i + 4
        A(f"buffer_load_dwordx4 v[{VR+4*i}:{VR+4*i+3}], v{B0+r//4}, {R(S1)}, 0 offen offset:{(r % 4)*1280}")
    for r in range(1, 4): ldk(r)
    for i in range(8): ldk(i+4); ldv(i)
    nonce_issue(A, VN)
    ts(A, 16)
    A(f"""
    s_mul_i32 s86, s86, {NTD}              ; ch0
    s_lshr_b32 s{sPR}, s{sWV}, 1
    s_add_u32 s{sCH}, s86, s{sPR}
    s_mul_i32 s{sLB}, s{sPR}, {CONV_WSZ}
    """)
    conv_setup(A)
    A(f"""
    v_lshlrev_b32 v{SO}, 12, v8
    v_lshl_add_u32 v{SO}, v9, 4, v{SO}
    s_mul_i32 s83, s98, {KRG}
    s_sub_u32 s100, 1984, s99
    s_lshl_b32 s100, s100, 1
    s_add_u32 s83, s83, s100
    s_add_u32 s83, s83, {KR_OFF}
    s_lshl_b32 s100, s98, {5+LFS}
    s_lshl_b32 s101, s96, {LFS}
    s_add_u32 s100, s100, s101
    s_add_u32 s95, s100, {FL_OFF + KVF_OFF}
    v_sub_u32 v10, 7, v8
    v_xor_b32 v10, v10, v9
    v_lshlrev_b32 v10, 4, v10
    v_lshlrev_b32 v{SC_}, 4, v9
    s_mul_i32 s100, s{sHP}, {G1-G0}
    s_add_u32 s100, s100, s{sLB}
    s_add_u32 s100, s100, {G0}
    s_cmp_ge_u32 s{sWV}, 4
    s_cbranch_scc1 L_pr_l0
    v_lshl_add_u32 v{SWa}, v9, 10, v10
    v_lshrrev_b32 v{SRa}, 2, v9
    v_mul_u32_u24 v{SRa}, {4*CONV_WSZ - 4096}, v{SRa}
    v_add3_u32 v{SWa}, s100, v{SWa}, v{SRa}
    v_lshlrev_b32 v{SRa}, 7, v8
    v_add_u32 v{SRa}, s100, v{SRa}
    s_branch L_pr_l1
    L_pr_l0:
    v_lshl_add_u32 v{SWa}, v9, 9, v10
    v_add_u32 v{SWa}, s100, v{SWa}
    v_lshrrev_b32 v10, 2, v8               ; (l>>5)
    v_bfe_u32 v{SRa}, v1, 3, 2
    v_lshlrev_b32 v{SRa}, 7, v{SRa}
    v_lshl_add_u32 v{SRa}, v10, 9, v{SRa}
    v_add_u32 v{SRa}, s100, v{SRa}
    v_lshlrev_b32 v10, 4, v10
    v_xor_b32 v{SC_}, v{SC_}, v10          ; col ^ (l>>5)
    v_lshrrev_b32 v10, 5, v1
    v_bfe_u32 v{SO}, v1, 3, 2
    v_lshl_add_u32 v{SO}, v10, 3, v{SO}
    v_lshlrev_b32 v{SO}, 12, v{SO}
    v_lshl_add_u32 v{SO}, v9, 4, v{SO}
    L_pr_l1:
    s_waitcnt vmcnt({19 + 1})
    """)
    for cp in range(4):
        for j in range(4):
            for e in range(2):
                src = SK + 2*(2*cp + e) + j//2
                d = TP + 8*cp + 2*j + e
                if j % 2 == 0: A(f"v_lshlrev_b32 v{d}, 16, v{src}")
                else: A(f"v_and_b32 v{d}, 0xffff0000, v{src}")
    ts(A, 17)
    def unpk(r):
        for cp in range(4):
            d = KF + 8*(r % 4) + 2*cp
            A(f"v_lshlrev_b32 v{d}, 16, v{KR+4*r+cp}")
            A(f"v_and_b32 v{d+1}, 0xffff0000, v{KR+4*r+cp}")
    pr = lambda b: f"v[{b}:{b+1}]"
    A(f"s_waitcnt vmcnt({16 + 1})")
    ts(A, 1)
    for r in range(1, 4): unpk(r)
    for i in range(8):
        A(f"s_waitcnt vmcnt({1 + 2*(7-i) + 1})")
        unpk(i+4)
        cur = KV + 8*(i & 1); prv = KV + 8*(1 - (i & 1))
        kf = lambda r, cp: pr(KF + 8*(r % 4) + 2*cp)
        for cp in range(4): A(f"v_pk_mul_f32 {pr(cur+2*cp)}, {kf(i+1, cp)}, {pr(TP+8*cp+6)}")
        for j in (2, 1, 0):
            for cp in range(4): A(f"v_pk_fma_f32 {pr(cur+2*cp)}, {kf(i+4-j, cp)}, {pr(TP+8*cp+2*j)}, {pr(cur+2*cp)}")
        A(f"s_waitcnt vmcnt({1 + 2*(7-i)})")
        for cp in range(4):
            vf = VF + 2*(cp & 1)
            A(f"v_lshlrev_b32 v{vf}, 16, v{VR+4*i+cp}")
            A(f"v_and_b32 v{vf+1}, 0xffff0000, v{VR+4*i+cp}")
            A(f"v_pk_mul_f32 {pr(cur+2*cp)}, {pr(cur+2*cp)}, v[{vf}:{vf+1}]")
        if i % 2 == 1:
            j = (7-i)//2
            for c in range(8):
                A(f"v_cvt_pk_bf16_f32 v{OUT + 4*c + j}, v{cur+c}, v{prv+c}")
        if i in (0, 3, 6, 7): ts(A, 18 + (0, 3, 6, 7).index(i))
    A(f"""
    s_cmp_ge_u32 s{sWV}, 4
    s_cbranch_scc1 L_pr_l2
    """)
    RD = 64
    for c in range(8): A(f"ds_write_b128 v{SWa}, v[{OUT+4*c}:{OUT+4*c+3}] offset:{128*c}")
    for sx in range(8):
        if sx == 4: A(f"v_add_u32 v{SRa}, {4*CONV_WSZ}, v{SRa}")
        A(f"v_xor_b32 v{16+sx}, {16*sx}, v{SC_}")
        A(f"v_add_u32 v{16+sx}, v{16+sx}, v{SRa}")
    A("s_waitcnt lgkmcnt(0)")
    for sx in range(8):
        A(f"ds_read_b128 v[{RD+4*sx}:{RD+4*sx+3}], v{16+sx} offset:{1024*(sx % 4)}")
    for sx in range(8):
        A(f"s_waitcnt lgkmcnt({7-sx})")
        A(f"buffer_store_dwordx4 v[{RD+4*sx}:{RD+4*sx+3}], v{SO}, {R(SW)}, s83 offen sc1")
        if sx < 7: A("s_add_u32 s83, s83, 32768")
    A(f"""
    s_add_u32 s84, s{sCH}, 4
    s_add_u32 s85, s{sLB}, {4*CONV_WSZ}
    """)
    load_F(A, sCH, sLB, V['hd'])
    load_F(A, 84, 85, V['hd2'])
    A("s_waitcnt vmcnt(18)")
    A("s_branch L_pr_l3")
    A("L_pr_l2:")
    for sx in range(4):
        A(f"v_xor_b32 v{16+sx}, {32*sx}, v{SC_}")
        A(f"v_add_u32 v{16+sx}, v{16+sx}, v{SRa}")
    for ps in range(2):
        for c in range(4): A(f"ds_write_b128 v{SWa}, v[{OUT+16*ps+4*c}:{OUT+16*ps+4*c+3}] offset:{128*c}")
        A("s_waitcnt lgkmcnt(0)")
        for sx in range(4):
            A(f"ds_read_b128 v[{RD+16*ps+4*sx}:{RD+16*ps+4*sx+3}], v{16+sx} offset:{1024*sx}")
        for sx in range(4):
            A(f"s_waitcnt lgkmcnt({3-sx})")
            A(f"s_add_u32 s100, s83, {65536*sx + 16384*ps}")
            A(f"buffer_store_dwordx4 v[{RD+16*ps+4*sx}:{RD+16*ps+4*sx+3}], v{SO}, {R(SW)}, s100 offen sc1")
    load_F(A, sCH, sLB, V['hd'])
    A("s_waitcnt vmcnt(9)")
    A("L_pr_l3:")
    w_setup(A)
    ts(A, 2)
    A(f"v_readfirstlane_b32 s{sNON}, v{VN}")
    nonce_ensure(A, VN)
    flag_store(A, 16, "s95")
    ts(A, 3)
    L, D_ = A.label("L_kvp"), A.label("L_kvd")
    A(f"""
    s_lshr_b32 s100, s86, 6
    s_add_u32 s101, s86, {NTD-1}
    s_lshr_b32 s101, s101, 6
    s_sub_u32 s101, s101, s100
    s_lshl_b32 s{sKVF}, s100, {5+LFS}
    s_add_u32 s{sKVF}, s{sKVF}, {FL_OFF + KVF_OFF}
    s_lshl_b32 s101, s101, 5
    s_add_u32 s101, s101, 31
    v_and_b32 v17, s101, v1
    v_lshlrev_b32 v17, {LFS}, v17
    v_min_u32 v19, 53, v1
    v_lshlrev_b32 v19, {LFS}, v19
    """)
    zero_pads(A, sLB, 20, 16)
    A(f"""
    s_mov_b32 s74, {SPIN}
    {L}:
    buffer_load_dword v16, v17, {R(SW)}, s{sKVF} offen sc1
    buffer_load_dword v18, v19, {R(SW)}, s{sWFO} offen sc1
    s_waitcnt vmcnt(0)
    v_cmp_ne_u32 vcc, s{sNON}, v18
    s_and_b32 vcc_hi, vcc_hi, 0x3fffff
    v_cmp_ne_u32_e64 s[100:101], s{sNON}, v16
    s_or_b64 vcc, vcc, s[100:101]
    s_cbranch_scc0 {D_}
    s_sub_u32 s74, s74, 1
    s_cmp_lg_u32 s74, 0
    s_cbranch_scc1 {L}
    {D_}:
    """)
    ts(A, 5)
    load_G(A, sCH, sLB)
    A(f"""
    s_mov_b32 s{sTASK}, 0
    s_mov_b32 s{sNTASK}, 1
    s_mov_b32 s{sGL}, {1+8}
    s_cmp_ge_u32 s{sWV}, 4
    s_cbranch_scc1 L_pr_w
    """)
    load_G(A, 84, 85)
    zero_pads(A, 85, 20, 16)
    A(f"""
    s_mov_b32 s{sNTASK}, 2
    s_mov_b32 s{sGL}, {1+8+16}
    L_pr_w:
    """)
    for n in range(5*NWR):
        for l in wload(n): A(l)

def gemm2(A):
    A("L_g2_go:")
    L, D_ = A.label("L_hp"), A.label("L_hpd")
    A(f"""
    s_lshr_b32 s96, s{sMT2}, 1
    s_lshl_b32 s96, s96, {6+LFS}
    s_add_u32 s96, s96, {FL_OFF + HF_OFF}
    s_ff1_i32_b64 s100, s[{sMK}:{sMK+1}]   ; kb0
    v_cmp_gt_u32 vcc, 7, v1
    v_cndmask_b32 v14, 0, v1, vcc
    v_lshl_add_u32 v14, v14, 2, s100
    v_cmp_gt_u32 vcc, 54, v14
    v_mov_b32 v15, s100
    v_cndmask_b32 v14, v15, v14, vcc
    v_lshlrev_b32 v14, {LFS}, v14
    s_mov_b32 s{sZD}, 0
    s_waitcnt vmcnt(0)
    s_cmp_eq_u32 s{sZP}, 0
    s_cbranch_scc1 L_g2_nzp
    """)
    flag_store(A, 15, f"s{sZP}")
    A("L_g2_nzp:")
    ts(A, 8)
    A(f"""
    s_mov_b32 s74, {SPIN}
    {L}:
    buffer_load_dword v{VFL}, v14, {R(SW)}, s96 offen sc1
    s_waitcnt vmcnt(0)
    v_cmp_ne_u32 vcc, s{sNON}, v{VFL}
    s_cmp_eq_u64 vcc, 0
    s_cbranch_scc1 {D_}
    s_sub_u32 s74, s74, 1
    s_cmp_lg_u32 s74, 0
    s_cbranch_scc1 {L}
    {D_}:
    """)
    ts(A, 9)
    free = [96, 100, 104, 108, 248, 252]
    todo = [("h", i, a) for i in range(NS2-1) for a in range(4)] + [("w", nb) for nb in range(5)] + [("h", NS2-1, a) for a in range(4)]
    todo.insert(todo.index(("h", 5, 0)), ("zf2",))
    todo.insert(todo.index(("h", 5, 0)), ("zf",))
    A(f"""
    s_lshr_b32 s96, s{sMT2}, 4
    s_mul_i32 s96, s96, {640*FS}
    s_mul_i32 s97, s{sNT2}, {80*FS}
    s_add_u32 s96, s96, s97
    s_add_u32 s96, s96, {FL_OFF + ZF_OFF}
    v_lshlrev_b32 v15, {LFS}, v1
    v_min_u32 v14, 15, v1
    v_add_u32 v14, 64, v14
    v_lshlrev_b32 v{VZ2}, {LFS}, v14
    """)
    q = []; loc = {}
    MAXF = 16
    state = dict(done=-1)
    def pump(maxn=99):
        n = 0
        while todo and free and n < maxn and len(q) - 1 - state['done'] < MAXF:
            if todo[0] == ("zf",):
                q.append(todo.pop(0))
                A(f"buffer_load_dword v{VZF}, v15, {R(SW)}, s96 offen sc1")
                continue
            if todo[0] == ("zf2",):
                q.append(todo.pop(0))
                A(f"buffer_load_dword v{VZF+1}, v{VZ2}, {R(SW)}, s96 offen sc1")
                continue
            t = todo.pop(0); r = free.pop(0); loc[t] = r; q.append(t); n += 1
            if t == ("w", 0):
                A(f"""
                s_and_b32 s100, s{sWV}, 6
                s_cmp_eq_u32 s100, 2
                s_cselect_b32 s{sWO}, 0x40000000, s{sWO}
                s_cselect_b32 s{sHA}, 0x40000000, s{sHA}
                s_cselect_b32 s{sHA+1}, 0x40000000, s{sHA+1}
                s_cselect_b32 s{sHA+2}, 0x40000000, s{sHA+2}
                s_cselect_b32 s{sHA+3}, 0x40000000, s{sHA+3}
                """)
            if t[0] == "h":
                a = t[2]
                A(f"buffer_load_dwordx4 v[{r}:{r+3}], v{L16}, {R(SW)}, s{sHA+a} offen")
                if t[1] < NS2-1: A(f"s_add_u32 s{sHA+a}, s{sHA+a}, 4096")
            else:
                for l in wload(t[1], r): A(l)
    pump()
    def zload():
        A(f"""
        v_lshrrev_b32 v{T2}, 1, v1
        v_lshlrev_b32 v{T2}, 12, v{T2}
        v_and_b32 v14, 1, v1
        v_lshl_add_u32 v{T2}, v14, 4, v{T2}
        s_mul_i32 s100, s{sNT2}, {80*4096}
        s_lshl_b32 s101, s{sTOK}, 1
        s_add_u32 s100, s100, s101
        s_add_u32 s100, s100, {ZT_OFF}
        s_mul_i32 s101, s{sWV}, 2560
        s_add_u32 m0, s101, {ZT_L}
        """)
        for i in range(3):
            if i == 2: A("s_mov_b32 exec_hi, 0")
            A(f"buffer_load_dwordx4 v{T2}, {R(SW)}, s100 offen lds")
            if i == 2: A("s_mov_b32 exec_hi, -1")
            if i < 2:
                A(f"s_add_u32 m0, m0, 1024")
                A(f"s_add_u32 s100, s100, {32*4096}")
    def zcheck():
        A(f"""
        v_cmp_ne_u32 vcc, s{sNON}, v{VZF}
        v_cmp_ne_u32_e64 s[100:101], s{sNON}, v{VZF+1}
        s_or_b64 vcc, vcc, s[100:101]
        s_cmp_eq_u64 vcc, 0
        """)
    def pwrite(a):
        for nb in range(5):
            ac = ACC2 + (a*5 + nb)*4
            A(f"ds_write_b128 v{VP+a}, v[{ac}:{ac+3}] offset:{nb*1024}")
    for i in range(NS2):
        for a in range(4):
            need = [("h", i, a)] + ([("w", nb) for nb in range(5)] if i == NS2-1 else [])
            ni = max(q.index(t) for t in need)
            if ni > state['done']:
                A(f"s_waitcnt vmcnt({len(q) - 1 - ni})"); state['done'] = ni
            if i == 5 and a == 0:
                assert ni >= q.index(("zf",))
                A(f"""
                s_cmp_ge_u32 s{sWV}, 4
                s_cbranch_scc1 L_g2_nz
                """)
                zcheck()
                A("s_cbranch_scc0 L_g2_nz")
                zload()
                A(f"s_mov_b32 s{sZD}, 1")
                A("L_g2_nz:")
            if i == NS2-1 and a == 0:
                A(f"""
                s_cmp_lt_u32 s{sWV}, 4
                s_cbranch_scc1 L_g2_ncw
                """)
                lds_wait_done(A, 4)
                A("L_g2_ncw:")
            hb = loc[("h", i, a)]
            for nb in range(5):
                ac = ACC2 + (a*5 + nb)*4
                wf = WR + 20*i + 4*nb if i < NWR else loc[("w", nb)]
                src = "0" if i == 0 else f"v[{ac}:{ac+3}]"
                A(f"v_mfma_f32_16x16x32_bf16 v[{ac}:{ac+3}], v[{wf}:{wf+3}], v[{hb}:{hb+3}], {src}")
                if a == 3 and i < NWR:
                    free.append(wf); pump(1)
            free.append(hb); pump(1)
            if i == NS2-1 and a >= 1: pwrite(a-1)
    assert not todo
    ts(A, 10)
    A(f"""
    s_cmp_lt_u32 s{sWV}, 4
    s_cbranch_scc1 L_g2_c
    """)
    pwrite(3)
    A("s_waitcnt lgkmcnt(0)")
    A("s_barrier")
    ts_store(A, 14)
    A("s_branch L_end")
    A("L_g2_c:")
    OWN = ACC2 + 60
    L, D_ = A.label("L_zp"), A.label("L_zpd")
    A(f"""
    s_cmp_lg_u32 s{sZD}, 0
    s_cbranch_scc1 L_g2_zd
    s_mov_b32 s74, {SPIN}
    {L}:
    buffer_load_dword v{VZF}, v15, {R(SW)}, s96 offen sc1
    buffer_load_dword v{VZF+1}, v{VZ2}, {R(SW)}, s96 offen sc1
    s_waitcnt vmcnt(0)
    """)
    zcheck()
    A(f"""
    s_cbranch_scc1 {D_}
    s_sub_u32 s74, s74, 1
    s_cmp_lg_u32 s74, 0
    s_cbranch_scc1 {L}
    {D_}:
    """)
    zload()
    A("L_g2_zd:")
    L, D_ = A.label("L_sp"), A.label("L_spd")
    A(f"""
    v_add_u32 v{T2}, s{sTOK}, v2
    v_lshlrev_b32 v{T2}, 3, v{T2}
    s_mov_b32 s74, {SPIN}
    s_mov_b32 s100, {ST_OFF}
    {L}:
    v_cmp_ne_u32 vcc, s{sNON}, v{STR+1}
    s_cmp_eq_u64 vcc, 0
    s_cbranch_scc1 {D_}
    buffer_load_dwordx2 v[{STR}:{STR+1}], v{T2}, {R(SW)}, s100 offen sc1
    s_waitcnt vmcnt(0)
    s_sub_u32 s74, s74, 1
    s_cmp_lg_u32 s74, 0
    s_cbranch_scc1 {L}
    {D_}:
    v_and_b32 v{STR+1}, 0xffff0000, v{STR}
    v_lshlrev_b32 v{STR}, 16, v{STR}
    v_rcp_f32 v{STR+1}, v{STR+1}
    s_mul_i32 s100, s{sWV}, {3*5120}
    s_add_u32 s100, s100, {PC_L}
    v_add_u32 v14, s100, v{L16}
    s_mul_i32 s100, s{sWV}, {4*5120}
    s_add_u32 s100, s100, {PL_L}
    v_add_u32 v15, s100, v{L16}
    s_waitcnt vmcnt(0) lgkmcnt(0)
    s_barrier
    """)
    ts(A, 11)
    P = [128 + 20*k for k in range(6)] + [ACC2]
    for k in range(7):
        for nb in range(5):
            va, so = (14, k*5120) if k < 3 else (15, (k-3)*5120)
            A(f"ds_read_b128 v[{P[k]+4*nb}:{P[k]+4*nb+3}], v{va} offset:{so + nb*1024}")
    ZR = 40
    for nb in range(5):
        A(f"ds_read_b64_tr_b16 v[{ZR+2*nb}:{ZR+2*nb+1}], v{ZA} offset:{512*nb}")
    for k in range(7):
        rem = (6-k)*5 + 5
        A(f"s_waitcnt lgkmcnt({min(rem, 15)})")
        for nb in range(5):
            for p in range(2):
                a = OWN + 4*nb + 2*p; b = P[k] + 4*nb + 2*p
                A(f"v_pk_add_f32 v[{a}:{a+1}], v[{a}:{a+1}], v[{b}:{b+1}]")
    A("s_waitcnt lgkmcnt(0)")
    T = 52
    for nb in range(5):
        for p in range(2):
            xr, zr = XR + 2*nb + p, ZR + 2*nb + p
            a = OWN + 4*nb + 2*p
            A(f"""
            v_lshlrev_b32 v{T}, 16, v{xr}
            v_and_b32 v{T+1}, 0xffff0000, v{xr}
            v_lshlrev_b32 v{T+2}, 16, v{zr}
            v_and_b32 v{T+3}, 0xffff0000, v{zr}
            v_add_f32 v{a}, v{a}, v{T}
            v_add_f32 v{a+1}, v{a+1}, v{T+1}
            v_sub_f32 v{T}, v{T}, v{STR}
            v_sub_f32 v{T+1}, v{T+1}, v{STR}
            v_mul_f32 v{T+2}, v{T+2}, v{STR+1}
            v_mul_f32 v{T+3}, v{T+3}, v{STR+1}
            v_fmac_f32 v{a}, v{T}, v{T+2}
            v_fmac_f32 v{a+1}, v{T+1}, v{T+3}
            v_cvt_pk_bf16_f32 v{xr}, v{a}, v{a+1}
            """)
        A(f"buffer_store_dwordx2 v[{XR+2*nb}:{XR+2*nb+1}], v{XO}, {R(S2)}, 0 offen offset:{32*nb}")
    ts(A, 12)
    ts_store(A, 14)

def gen(name="fused_kernel"):
    A = Asm()
    A(f"""
    s_cmp_ge_u32 s2, 256
    s_cbranch_scc1 L_end
    s_load_dwordx16 s[48:63], s[0:1], 0
    s_load_dwordx8 s[64:71], s[0:1], 64
    s_load_dwordx2 s[72:73], s[0:1], 96
    v_lshrrev_b32 v2, 6, v0
    v_and_b32 v1, 63, v0
    v_readfirstlane_b32 s{sWV}, v2
    s_and_b32 s{sXCD}, s2, 7
    s_lshr_b32 s{sSLOT}, s2, 3
    s_lshr_b32 s96, s{sXCD}, 1             ; b
    s_mul_i32 s97, s96, 27
    s_add_u32 s97, s97, s{sSLOT}           ; idx
    s_lshr_b32 s{sNT}, s97, 2
    s_and_b32 s97, s97, 3
    s_and_b32 s98, s{sXCD}, 1
    s_lshl_b32 s98, s98, 2
    s_add_u32 s{sMT}, s97, s98
    s_lshl_b32 s{sMT2}, s{sMT}, 2
    s_add_u32 s{sMT2}, s{sMT2}, s96
    s_lshr_b32 s{sNT2}, s{sSLOT}, 2
    s_mov_b32 s{sNON}, 0
    s_mov_b32 s{sZP}, 0
    v_and_b32 v2, 15, v1
    v_lshrrev_b32 v3, 4, v1
    """)
    if DBG: A(f"v_mov_b32 v{VTS}, 0")
    ts(A, 0)
    A("s_waitcnt lgkmcnt(0)")
    srd(A, S6, P_DBG, 256)
    srd(A, SW, P_WS, SZ_WS)
    A(f"""
    s_cmp_ge_u32 s{sSLOT}, 27
    s_cbranch_scc1 L_prep
    s_cmp_lt_u32 s{sWV}, 4
    s_cbranch_scc1 L_g1c
    """)
    g1_loader(A)
    A("L_g1c:")
    g1_compute(A)
    A("L_prep:")
    prep(A)
    conv_task(A)
    gemm2(A)
    A("L_end:")
    return kernel_wrap(name, A.text(), vgpr=256)

if __name__ == "__main__":
    from build import HEAD, NAME
    out = sys.argv[1]
    DBG = len(sys.argv) > 2 and sys.argv[2] == "dbg"
    txt = HEAD + f"; @launch kernel=fused_kernel grid=(256,1,1) block=(512,1,1) lds={LDS_TOTAL}\n"
    txt += '.amdgcn_target "amdgcn-amd-amdhsa--gfx950"\n' + gen()
    open(out, "w").write(txt)
```
